```python
import torch

def _softmax(x, axis=-1):
    return torch.softmax(x, dim=axis)
def _gelu(x):
    return torch.nn.functional.gelu(x, approximate="tanh")
def _silu(x):
    return torch.nn.functional.silu(x)
def _sigmoid(x):
    return torch.sigmoid(x)
def _layernorm(x, axis=-1, eps=1e-5):
    m = x.mean(dim=axis, keepdim=True)
    v = x.var(dim=axis, keepdim=True, unbiased=False)
    return (x - m) / torch.sqrt(v + eps)
def _scatter_add(tgt, idx, src, axis=0):
    return tgt.clone().index_add_(axis, idx, src)
def _segment_sum(src, seg, n):
    out = torch.zeros((n,) + src.shape[1:], dtype=src.dtype)
    return out.index_add_(0, seg, src)
def _pad(x, pw):
    flat = tuple(v for pair in reversed(pw) for v in pair)
    return torch.nn.functional.pad(x, flat)

kernel_name = 'interleave_layers__sliding_block_cached__dense_activation_gelu__decode'

def setup_inputs():

    _w = (lambda a: (lambda t: t.to(torch.bfloat16) if t.is_floating_point() else t)(torch.as_tensor(a)))
    def _A_setup():
        B, Sq, D = 4, 1, 576
        Hq, Hkv, Sk, Dh = 32, 16, 8192, 128
        assert Hq % Hkv == 0, (Hq, Hkv)
        return {
            "x": _w((lambda *s: torch.randn(*s, dtype=torch.bfloat16) * 0.05)(B, Sq, D)),
            "k_cache": _w((lambda *s: torch.randn(*s, dtype=torch.bfloat16) * 0.8)(B, Hkv, Sk, Dh)),
            "v_cache": _w((lambda *s: torch.randn(*s, dtype=torch.bfloat16) * 1.6)(B, Hkv, Sk, Dh)),
            "wq": _w((lambda *s: torch.randn(*s, dtype=torch.bfloat16) * 0.8)(D, Hq * Dh) * (D ** -0.5)),
            "wo": _w((lambda *s: torch.randn(*s, dtype=torch.bfloat16) * 1.6)(Hq * Dh, D) * ((Hq * Dh) ** -0.5)),
        }
    _A_in = _A_setup()

    def _B_setup():
        B, S, D, F = 4, 1, 576, 4608
        return {
            "x": _w((lambda *s: torch.randn(*s, dtype=torch.bfloat16) * 0.05)(B, S, D)),
            "w1": _w((lambda *s: torch.randn(*s, dtype=torch.bfloat16) * 0.4)(D, F) * (D ** -0.5)),
            "b1": _w((lambda *s: torch.randn(*s, dtype=torch.bfloat16) * 0.4)(F) * 0.01),
            "w2": _w((lambda *s: torch.randn(*s, dtype=torch.bfloat16) * 0.4)(F, D) * (F ** -0.5)),
            "b2": _w((lambda *s: torch.randn(*s, dtype=torch.bfloat16) * 0.4)(D) * 0.01),
        }
    _B_in = _B_setup()

    return {
        "A_x": _A_in["x"],
        "A_k_cache": _A_in["k_cache"],
        "A_v_cache": _A_in["v_cache"],
        "A_wq": _A_in["wq"],
        "A_wo": _A_in["wo"],
        "B_x": _B_in["x"],
        "B_w1": _B_in["w1"],
        "B_b1": _B_in["b1"],
        "B_w2": _B_in["w2"],
        "B_b2": _B_in["b2"],
    }

def reference(A_x, A_k_cache, A_v_cache, A_wq, A_wo, B_x, B_w1, B_b1, B_w2, B_b2):
    def _A_ref(x, k_cache, v_cache, wq, wo):
        B, Sq, D = x.shape
        Hq, Dh = 32, 128
        Hkv, Sk = k_cache.shape[1], k_cache.shape[2]
        W = min(4096, max(256, Sk // 4))
        rep = Hq // Hkv
        q = (lambda x, *d: x.permute(*d))((x @ wq).reshape(B, Sq, Hq, Dh), 0, 2, 1, 3)
        k = (lambda x, n, axis: torch.repeat_interleave(x, n, dim=axis))(k_cache[:, :, Sk - W:, :], rep, axis=1)
        v = (lambda x, n, axis: torch.repeat_interleave(x, n, dim=axis))(v_cache[:, :, Sk - W:, :], rep, axis=1)
        scores = torch.einsum("bhqd,bhkd->bhqk", q, k) * (Dh ** -0.5)
        p = _softmax(scores, axis=-1)
        o = torch.einsum("bhqk,bhkd->bhqd", p, v)
        return (lambda x, *d: x.permute(*d))(o, 0, 2, 1, 3).reshape(B, Sq, Hq * Dh) @ wo

    def _B_ref(x, w1, b1, w2, b2):
        h = torch.einsum("bsd,df->bsf", x, w1) + b1
        h = _gelu(h)
        return torch.einsum("bsf,fd->bsd", h, w2) + b2

    x = A_x
    x = x + _A_ref(_layernorm(x, axis=-1), A_k_cache, A_v_cache, A_wq, A_wo)
    x = x + _B_ref(_layernorm(x, axis=-1), B_w1, B_b1, B_w2, B_b2)
    x = x + _A_ref(_layernorm(x, axis=-1), A_k_cache, A_v_cache, A_wq, A_wo)
    x = x + _B_ref(_layernorm(x, axis=-1), B_w1, B_b1, B_w2, B_b2)
    return x
```

```python
import re, os
MF0 = int(os.environ.get('MF0', '0'))

TRANS = ("v_exp_f32", "v_log_f32", "v_rcp_f32", "v_rsq_f32", "v_sqrt_f32", "v_sin_f32", "v_cos_f32")
DPPK = ("quad_perm", "row_shl", "row_shr", "row_ror", "row_mirror", "row_half_mirror", "row_bcast", "wave_")

def regs_of(op):
    op = op.strip()
    op = op.lstrip("-").strip("|")
    m = re.fullmatch(r"([vas])(\d+)", op)
    if m:
        return [(m.group(1), int(m.group(2)))]
    m = re.fullmatch(r"([vas])\[(\d+):(\d+)\]", op)
    if m:
        return [(m.group(1), k) for k in range(int(m.group(2)), int(m.group(3)) + 1)]
    if op == "vcc":
        return [("s", 106), ("s", 107)]
    if op == "vcc_lo":
        return [("s", 106)]
    if op == "vcc_hi":
        return [("s", 107)]
    if op == "exec":
        return [("s", 126), ("s", 127)]
    if op == "m0":
        return [("s", 124)]
    return []

def split_ops(rest):
    out, depth, cur = [], 0, ""
    for ch in rest:
        if ch in "[(":
            depth += 1
        if ch in "])":
            depth -= 1
        if ch == "," and depth == 0:
            out.append(cur); cur = ""
        else:
            cur += ch
    if cur.strip():
        out.append(cur)
    return [o.strip() for o in out]

class Ins:
    pass

def parse(line):
    s = line.split(";")[0].strip()
    if not s or s.endswith(":") or s.startswith("."):
        return None
    parts = s.split(None, 1)
    mn = parts[0]
    rest = parts[1] if len(parts) > 1 else ""
    ops = split_ops(rest)
    mods = ""
    if ops:
        t = ops[-1].split(None, 1)
        if len(t) > 1 and not t[0].startswith("hwreg"):
            ops[-1] = t[0]; mods = t[1]
    I = Ins()
    I.mn, I.ops, I.mods = mn, ops, mods
    I.w, I.r = [], []
    I.cls = "other"
    I.srcC = []
    I.AB = []
    base = re.sub(r"_(e32|e64|dpp|sdwa)$", "", mn)
    I.base = base
    R = [regs_of(o) for o in ops]
    if base.startswith("v_mfma") or base.startswith("v_smfmac"):
        I.cls = "mfma"
        I.w = R[0]; I.AB = R[1] + R[2]
        if base.startswith("v_smfmac"):
            I.srcC = R[0]; I.AB += R[3]
        else:
            I.srcC = R[3]
        I.r = I.AB + I.srcC
    elif base.startswith("v_"):
        I.cls = "valu"
        if base.startswith("v_cmp"):
            I.w = R[0]; I.r = sum(R[1:], [])
        elif base.startswith("v_permlane") and "swap" in base:
            I.w = R[0] + R[1]; I.r = R[0] + R[1]
        elif base in ("v_add_co_u32", "v_sub_co_u32", "v_addc_co_u32", "v_subb_co_u32"):
            I.w = R[0] + R[1]; I.r = sum(R[2:], [])
        elif base == "v_nop":
            pass
        else:
            I.w = R[0]; I.r = sum(R[1:], [])
            if base in ("v_fmac_f32", "v_mac_f32", "v_pk_fmac_f16", "v_dot2c_f32_bf16", "v_writelane_b32"):
                I.r += R[0]
            if base == "v_cndmask_b32" and len(ops) == 3:
                I.r += regs_of("vcc")
        I.dpp = any(k in mods for k in DPPK)
        if I.dpp:
            I.r += R[0]
        I.trans = base in TRANS
    elif base.startswith("buffer_") or base.startswith("global_"):
        I.cls = "vmem"
        I.lds = bool(re.search(r"\blds\b", mods))
        if "load" in base and not I.lds:
            I.w = R[0]; I.r = sum(R[1:], [])
        else:
            I.r = sum(R, [])
        if I.lds:
            I.r += regs_of("m0")
        I.wide = ("store" in base) and (base.endswith("x3") or base.endswith("x4"))
        if I.wide:
            I.data = R[0] if base.startswith("buffer_") else R[1]
    elif base.startswith("ds_"):
        I.cls = "ds"
        if "read" in base or "permute" in base or "swizzle" in base:
            I.w = R[0]; I.r = sum(R[1:], [])
        else:
            I.r = sum(R, [])
    elif base.startswith("s_"):
        I.cls = "salu"
        if base in ("s_nop", "s_waitcnt", "s_barrier", "s_endpgm", "s_sleep", "s_branch", "s_setprio") or base.startswith("s_cbranch"):
            pass
        elif base.startswith("s_cmp") or base.startswith("s_bitcmp"):
            I.r = sum(R, [])
        else:
            I.w = R[0] if R else []
            I.r = sum(R[1:], [])
            if "saveexec" in base:
                I.w = I.w + regs_of("exec")
    return I

def run(lines):
    out = []
    pos = 0
    last_valu_w = {}
    last_trans_w = {}
    last_mfma_w = {}
    last_mfma_c = {}
    last_wide = {}
    last_salu_m0 = -100
    nnop = 0
    for line in lines:
        I = parse(line)
        if I is None:
            out.append(line); continue
        need = 0
        def req(p, n):
            nonlocal need
            need = max(need, n - (pos - p - 1))
        if I.cls == "mfma":
            for r in I.r:
                if r in last_valu_w: req(last_valu_w[r], 2)
            for r in I.AB:
                if r in last_mfma_w: req(last_mfma_w[r][0], 8)
            for r in I.srcC:
                if r in last_mfma_w:
                    if last_mfma_w[r][1] != tuple(I.srcC): req(last_mfma_w[r][0], 6)
        elif I.cls == "valu":
            for r in I.r + I.w:
                if r in last_mfma_w: req(last_mfma_w[r][0], 8)
            for r in I.w:
                if r in last_mfma_c: req(last_mfma_c[r], 3)
                if r in last_wide: req(last_wide[r], 2)
            for r in I.r:
                if r in last_valu_w:
                    if r[0] == "s":
                        req(last_valu_w[r], 4 if I.base in ("v_readlane_b32", "v_writelane_b32") else 2)
                    elif I.dpp or I.base.startswith("v_permlane"):
                        req(last_valu_w[r], 2)
                    elif I.base in ("v_readlane_b32", "v_readfirstlane_b32"):
                        req(last_valu_w[r], 1)
                if r in last_trans_w: req(last_trans_w[r], 1)
        elif I.cls in ("vmem", "ds"):
            for r in I.r + I.w:
                if r in last_mfma_w: req(last_mfma_w[r][0], 8)
            for r in I.r:
                if r[0] == "s" and r in last_valu_w: req(last_valu_w[r], 5)
                if r in last_trans_w: req(last_trans_w[r], 1)
            for r in I.w:
                if r in last_wide: req(last_wide[r], 1)
            if I.cls == "vmem" and I.lds: req(last_salu_m0, 1)
        elif I.cls == "salu":
            for r in I.r:
                if r in last_valu_w and r[0] == "s": req(last_valu_w[r], 1)
        while need > 0:
            k = min(need, 8)
            out.append(f"    s_nop {k-1}")
            pos += k; need -= k; nnop += 1
        out.append(line)
        if I.cls == "valu":
            for r in I.w:
                last_valu_w[r] = pos
                last_mfma_w.pop(r, None)
                if I.trans: last_trans_w[r] = pos
                else: last_trans_w.pop(r, None)
        elif I.cls == "mfma":
            for r in I.w:
                last_mfma_w[r] = (pos, tuple(I.w)); last_valu_w.pop(r, None); last_trans_w.pop(r, None)
            for r in I.srcC: last_mfma_c[r] = pos
        elif I.cls == "vmem":
            if I.wide:
                for r in I.data: last_wide[r] = pos
            for r in I.w:
                last_valu_w.pop(r, None); last_trans_w.pop(r, None)
        elif I.cls == "ds":
            for r in I.w:
                last_valu_w.pop(r, None); last_trans_w.pop(r, None)
        elif I.cls == "salu":
            for r in I.w:
                last_valu_w.pop(r, None)
                if r == ("s", 124): last_salu_m0 = pos
        if I.base == "s_nop":
            pos += int(I.ops[0]) + 1
        elif I.cls == "mfma" and MF0:
            pass
        else:
            pos += 1
    return out, nnop
```

```python
import sys, math, struct
import hz

NAME = "interleave_layers__sliding_block_cached__dense_activation_gelu__decode"
OPT = dict(DEBUG=0, D=4, FORCE_SLOW=0)
for a_ in sys.argv[2:]:
    k_, v_ = a_.split("="); OPT[k_] = int(v_)
DEBUG = OPT["DEBUG"]; DEPTH = OPT["D"]

def f32(x): return struct.unpack("<I", struct.pack("<f", x))[0]

class G:
    def __init__(s):
        s.L = []; s.vm = []; s.nl = 0; s.tail = []
    def __call__(s, t):
        for l in t.strip("\n").split("\n"):
            l = l.strip()
            if l: s.L.append(("    " + l) if not l.endswith(":") else l)
    def lab(s, p="L"):
        s.nl += 1; return f"{p}{s.nl}"
    def vmem(s, t, tag=None):
        s(t); s.vm.append(tag)
    def wait_vm(s, tag):
        idx = max(i for i, x in enumerate(s.vm) if x == tag)
        n = len(s.vm) - 1 - idx
        s(f"s_waitcnt vmcnt({min(n,63)})")
g = G()

_v = [1]
def V(n=1, al=1):
    while _v[0] % al: _v[0] += 1
    r = _v[0]; _v[0] += n; return r
def vr(b, n): return f"v[{b}:{b+n-1}]" if n > 1 else f"v{b}"
def ar(b, n): return f"a[{b}:{b+n-1}]"

vL = V(); vL4 = V(); vL8 = V(); vL16 = V()
vXF = V(); vXF2 = V(); vQF = V(); vOF = V(); vSF = V()
vQS = V(); vHS = V(); vRS = V()
vPW = V(); vPW1 = V(); vPR = V(); vPR4 = V(); vSTW = V(); vSTR = V()
vAOW = V(); vAOR = V(); vMW = V(); vMR = V(); vSS = V()
vWD1 = V(); vWD9 = V(); vT64a = V()
vB1 = V(); vCSQ = V(); vCS1 = V(); vSTAMP = V()
vB2 = V(2, 2); vRES = V(2, 2)
WQ = V(20, 2); WO = V(32, 2); W1 = V(40, 2); W2 = V(40, 2)
vKD = W2; vKR = W2 + 4; vVR = W2 + 8; vWQD = W2 + 16; vT32a = W2 + 17
XF = V(20, 2); QO = V(16, 2); D = V(32, 2); S = V(4, 2); T = V(14, 2)
NV = _v[0]
assert NV <= 256, NV
P = QO
ST = D + 16

sK, sV, sWQ, sWO, sW1, sW2, sWS, sWSF, sWSS, sOUT, sX0, sDBG = [32 + 4 * i for i in range(12)]
def sd(b): return f"s[{b}:{b+3}]"
sW, sG, sI, sBud, sU, sPass, sC, sGB = range(80, 88)
sOB, sSB, sXO, sXRd, sXB, sHB = range(88, 94)
sM4 = "s[94:95]"; sMT = "s[96:97]"; sMT0 = 96
t0, t1, t2, t3 = 98, 99, 100, 101
sRc, sCF2, sXF2, sFlag, sAO, sAS, sInv, sEps = range(24, 32)
s3 = 3
sRB, sOOR = 22, 23

GSTR = 65536
XB1, XB2, XB3 = 0, 5120, 10240
QB1 = 15360; OB0 = 19456; SB0 = 52224; HB0 = 53248
XR = 524288; XI = 73728
QB0 = 1 << 20
WSREC = (1 << 20) + 32768
STAMPS = 2 << 20
WREG = 37888
PA = 4 * WREG
PB = PA + 2048
PC = PA + 4096
STA = PA + 6144
STB = STA + 128
DUMP = STA + 256
AO = STA + 512
ME = AO + 4096
LDS_TOTAL = ME + 128
assert LDS_TOTAL <= 163840
LWO, LW1, LW2 = 0, 8192, 8192 + 10240

nstamp = [0]
def stamp():
    if DEBUG:
        k = nstamp[0]; nstamp[0] += 1
        assert k < 9
        g(f"s_memrealtime s[{4+2*k}:{5+2*k}]")
def flush_stamps(lane0):
    if DEBUG:
        g("s_waitcnt lgkmcnt(0)")
        for k in range(nstamp[0]):
            g(f"v_writelane_b32 v{vSTAMP}, s{4+2*k}, {lane0+k}")
        nstamp[0] = 0

def srd(dst, lo, hi, off, rec):
    if off == 0:
        g(f"s_mov_b32 s{dst}, s{lo}\ns_mov_b32 s{dst+1}, s{hi}")
    else:
        g(f"s_add_u32 s{dst}, s{lo}, {off}\ns_addc_u32 s{dst+1}, s{hi}, 0")
    g(f"s_mov_b32 s{dst+2}, {rec}\ns_mov_b32 s{dst+3}, 0x20000")

def mfma32(d, a, b, c): return f"v_mfma_f32_16x16x32_bf16 {vr(d,4)}, {a}, {b}, {c}"
def mfma16(d, a, b, c): return f"v_mfma_f32_16x16x16_bf16 {vr(d,4)}, {a}, {b}, {c}"

def weave(main, side, gaps):
    side = list(side)
    for i, m in enumerate(main):
        g(m)
        n = gaps[i] if i < len(gaps) else 0
        for _ in range(n):
            if side: g(side.pop(0))
    for x in side: g(x)

def chk_ops(regs, tmp):
    ops = []
    h = (len(regs) + 1) // 2
    A, B = regs[:h], regs[h:]
    def chain(rs, t):
        o = []
        if len(rs) >= 3:
            o.append(f"v_max3_u32 v{t}, v{rs[0]}, v{rs[1]}, v{rs[2]}"); k = 3
        else:
            o.append(f"v_max_u32 v{t}, v{rs[0]}, v{rs[1]}"); k = 2
        while k < len(rs):
            if k + 1 < len(rs):
                o.append(f"v_max3_u32 v{t}, v{t}, v{rs[k]}, v{rs[k+1]}"); k += 2
            else:
                o.append(f"v_max_u32 v{t}, v{t}, v{rs[k]}"); k += 1
        return o
    ca, cb = chain(A, tmp), chain(B, tmp + 1)
    for i in range(max(len(ca), len(cb))):
        if i < len(ca): ops.append(ca[i])
        if i < len(cb): ops.append(cb[i])
    ops.append(f"v_max_u32 v{tmp}, v{tmp}, v{tmp+1}")
    ops.append(f"v_cmp_eq_u32 vcc, -1, v{tmp}")
    return ops

def retry(loop):
    ok = g.lab("Lok")
    g(f"""s_cbranch_vccz {ok}
    s_sub_u32 s{sBud}, s{sBud}, 1
    s_cbranch_scc0 {loop}
    s_mov_b32 s{sBud}, 0
    {ok}:""")

def lstore(op, data, vaddr, soff, imm=0):
    o = f" offset:{imm}" if imm else ""
    g(f"{op} {data}, v{vaddr}, {sd(sWSF)}, {soff} offen{o}")
    g(f"{op} {data}, v{vaddr}, {sd(sWSS)}, {soff} offen{o} sc1")

def xfrag(ks): return vr(XF + 4 * ks, 4)
def wfrag(W, t, ks): return vr(W + 20 * t + 4 * ks, 4)
def mm(d, a, b, ks):
    c = "0" if ks == 0 else vr(d, 4)
    return mfma32(d, a, b, c)

def x_loads(srdb, soff, flags, tag=None):
    g(f"s_mov_b64 exec, {sM4}")
    for ks in range(4):
        g.vmem(f"buffer_load_dwordx4 {xfrag(ks)}, v{vXF}, {sd(srdb)}, {soff} offen offset:{64*ks}{flags}", tag)
    g.vmem(f"buffer_load_dwordx4 {xfrag(4)}, v{vXF2}, {sd(srdb)}, {soff} offen{flags}", tag)
    g("s_mov_b64 exec, -1")

def gram_merge(stb):
    G_ = D
    return [f"s_mov_b64 {sMT}, 2", f"v_cndmask_b32 v{G_}, v{G_}, v{G_+1}, {sMT}",
            f"s_mov_b64 {sMT}, 4", f"v_cndmask_b32 v{G_}, v{G_}, v{G_+2}, {sMT}",
            f"s_mov_b64 {sMT}, 8", f"v_cndmask_b32 v{G_}, v{G_}, v{G_+3}, {sMT}",
            f"ds_write_b32 v{vSTW}, v{G_} offset:{stb-STA}"]

def m4_mms(W, nt, ln, pa, stb, loop=None, colsum=None):
    Gm = [mm(D, xfrag(ks), xfrag(ks), ks) for ks in range(5)] if ln else []
    Tm = [[mm(D + 4 + 4 * t, wfrag(W, t, ks), xfrag(ks), ks) for ks in range(5)] for t in range(nt)]
    first = Gm if ln else Tm[0]
    if loop:
        weave(first[:3], chk_ops(list(range(XF, XF + 20)), T), [4, 4, 4])
        retry(loop)
        for m in first[3:]: g(m)
    else:
        for m in first: g(m)
    def pw(t): return [f"s_mov_b64 exec, {sM4}", f"ds_write_b128 v{vPW}, {vr(D+4+4*t,4)} offset:{pa-PA+256*t}", "s_mov_b64 exec, -1"]
    pend = gram_merge(stb) if ln else pw(0)
    rest = Tm if ln else Tm[1:]
    k0 = 0 if ln else 1
    for j, tm in enumerate(rest):
        weave(tm, pend, [0, 0, 0, 3, 4])
        pend = pw(k0 + j)
    if colsum is not None:
        for t in range(nt):
            cm = []
            for ks in range(5):
                b = vr(T + 4, 4)
                cm.append(mm(D + 12 + 4 * t, wfrag(W, t, ks), b, ks))
            weave(cm, pend, [0, 0, 0, 3, 4])
            pend = [f"s_mov_b64 exec, {sM4}", f"ds_write_b128 v{vPW}, {vr(D+12+4*t,4)} offset:{colsum-PA+256*t}", "s_mov_b64 exec, -1"]
    for x in pend: g(x)
    g("s_waitcnt lgkmcnt(0)\ns_barrier")

def m4_final_ln(pa, stb, cs, colsum=None):
    o = (pa - PA) // 256
    g(f"ds_read_b128 {vr(T+4,4)}, v{vSTR} offset:{stb-STA}")
    g(f"ds_read_b128 {vr(T+8,4)}, v{vSTR} offset:{stb-STA+16}")
    g(f"ds_read2st64_b32 {vr(T,2)}, v{vPR} offset0:{o} offset1:{o+2}")
    g(f"ds_read2st64_b32 {vr(T+2,2)}, v{vPR} offset0:{o+4} offset1:{o+6}")
    if colsum is not None:
        oc = (colsum - PA) // 256
        g(f"ds_read2st64_b32 {vr(D,2)}, v{vPR} offset0:{oc} offset1:{oc+2}")
        g(f"ds_read2st64_b32 {vr(D+2,2)}, v{vPR} offset0:{oc+4} offset1:{oc+6}")
        g(f"s_waitcnt lgkmcnt(0)")
        g(f"v_add_f32 v{D}, v{D}, v{D+1}\nv_add_f32 v{D+2}, v{D+2}, v{D+3}\nv_add_f32 v{cs}, v{D}, v{D+2}")
    g(f"""s_waitcnt lgkmcnt(2)
    v_pk_add_f32 {vr(T+4,2)}, {vr(T+4,2)}, {vr(T+6,2)}
    v_pk_add_f32 {vr(T+8,2)}, {vr(T+8,2)}, {vr(T+10,2)}
    v_pk_add_f32 {vr(T+4,2)}, {vr(T+4,2)}, {vr(T+8,2)}
    v_mul_f32 v{T+4}, s{sInv}, v{T+4}
    v_mov_b32 v{T+6}, s{sEps}
    v_fma_f32 v{T+5}, v{T+5}, s{sInv}, v{T+6}
    v_fma_f32 v{T+5}, -v{T+4}, v{T+4}, v{T+5}
    v_rsq_f32 v{T+5}, v{T+5}
    s_waitcnt lgkmcnt(0)
    v_pk_add_f32 {vr(T,2)}, {vr(T,2)}, {vr(T+2,2)}
    v_add_f32 v{T}, v{T}, v{T+1}
    v_fma_f32 v{T}, -v{T+4}, v{cs}, v{T}""")

def pack_pairs(src, dst):
    g(f"v_mov_b32_dpp v{src+1}, v{src} quad_perm:[1,0,3,2] row_mask:0xf bank_mask:0xf")
    g(f"v_cvt_pk_bf16_f32 v{dst}, v{src}, v{src+1}")

def x_final(pa, soff):
    skip = g.lab("Lxf")
    g(f"s_cmp_lg_u32 s{sW}, 0\ns_cbranch_scc1 {skip}")
    q = [T, T + 4, T + 8, D]
    for w in range(4):
        g(f"ds_read_b128 {vr(q[w],4)}, v{vPR4} offset:{pa-PA+512*w}")
    g("s_waitcnt lgkmcnt(2)")
    g(f"v_pk_add_f32 {vr(T,2)}, {vr(T,2)}, {vr(T+4,2)}\nv_pk_add_f32 {vr(T+2,2)}, {vr(T+2,2)}, {vr(T+6,2)}")
    g("s_waitcnt lgkmcnt(0)")
    g(f"v_pk_add_f32 {vr(T+8,2)}, {vr(T+8,2)}, {vr(D,2)}\nv_pk_add_f32 {vr(T+10,2)}, {vr(T+10,2)}, {vr(D+2,2)}")
    g(f"s_mov_b32 exec_hi, 0")
    g(f"v_pk_add_f32 {vr(T,2)}, {vr(T,2)}, {vr(T+8,2)}\nv_pk_add_f32 {vr(T+2,2)}, {vr(T+2,2)}, {vr(T+10,2)}")
    g(f"buffer_store_dwordx4 {vr(T,4)}, v{vL16}, {sd(sWS)}, {soff} offen sc1")
    g("s_mov_b64 exec, -1")
    g(f"{skip}:")

def prep64(W, loc, nks, nt=2):
    n = 0
    for t in range(nt):
        for ks in range(nks):
            for h in range(2):
                base = W + 4 * nks * t + 4 * ks + 2 * h
                g(f"ds_read_b64_tr_b16 {vr(base,2)}, v{vT64a} offset:{loc+2048*ks+256*h+32*t}")
                n += 1
                if n % 12 == 0: g("s_waitcnt lgkmcnt(4)")
    g("s_waitcnt lgkmcnt(0)")

def wdma(srdb, vaddr, stride, rows_per_wave, loc, n0, n1, tag):
    if rows_per_wave == 128: g(f"s_mul_i32 s{t0}, s{sW}, {rows_per_wave*stride}")
    else: g(f"s_mul_i32 s{t0}, s{sRB}, {stride}")
    g(f"s_mul_i32 s{t1}, s{sW}, {WREG}")
    for n in range(n0, n1):
        g(f"s_add_u32 m0, s{t1}, {loc+1024*n}")
        if n == 8: g(f"s_add_u32 s{t0}, s{t0}, s{sOOR}")
        g(f"s_add_u32 s{t2}, s{t0}, {16*stride*n}")
        g.vmem(f"buffer_load_dwordx4 v{vaddr}, {sd(srdb)}, s{t2} offen nt lds", tag)

def red_steps(op, r, tmp):
    return [f"{op}_dpp v{r}, v{r}, v{r} quad_perm:[2,3,0,1] row_mask:0xf bank_mask:0xf",
            f"{op}_dpp v{r}, v{r}, v{r} row_ror:4 row_mask:0xf bank_mask:0xf",
            f"{op}_dpp v{r}, v{r}, v{r} row_ror:8 row_mask:0xf bank_mask:0xf",
            f"v_mov_b32 v{tmp}, v{r}", f"v_permlane16_swap_b32 v{r}, v{tmp}", f"{op} v{r}, v{r}, v{tmp}",
            f"v_mov_b32 v{tmp}, v{r}", f"v_permlane32_swap_b32 v{r}, v{tmp}", f"{op} v{r}, v{r}, v{tmp}"]

def q_loads(soff, tag=None):
    for ks in range(4):
        g.vmem(f"buffer_load_dwordx4 {vr(QO+4*ks,4)}, v{vQF}, {sd(sWS)}, {soff} offen offset:{64*ks} sc1", tag)

def qk(loop):
    acc = [S, D, D + 4]
    def tile(t):
        a = S if t == 0 else D + 4 * (t & 1)
        return [mfma32(a, ar(16 * t + 4 * ks, 4), vr(QO + 4 * ks, 4), "0" if ks == 0 else vr(a, 4)) for ks in range(4)]
    def merge(t):
        a = D + 4 * (t & 1)
        m = 0x0003000300030003 << (2 * t)
        return [f"s_mov_b32 s{sMT0}, {m & 0xffffffff:#x}", f"s_mov_b32 s{sMT0+1}, {m >> 32:#x}"] + \
               [f"v_cndmask_b32 v{S+r}, v{S+r}, v{a+r}, {sMT}" for r in range(4)]
    if loop:
        weave(tile(0)[:3], chk_ops(list(range(QO, QO + 16)), T), [4, 4, 4])
        retry(loop)
        g(tile(0)[3])
    else:
        for m in tile(0): g(m)
    for t in range(1, 8):
        weave(tile(t), merge(t - 1) if t > 1 else [], [2, 0, 0, 4])
    for x in merge(7): g(x)
    g(f"v_max3_f32 v{T}, v{S}, v{S+1}, v{S+2}\nv_max_f32 v{T}, v{T}, v{S+3}")
    for x in red_steps("v_max_f32", T, T + 1): g(x)

def softmax_p(mreg):
    for r in range(4): g(f"v_fma_f32 v{S+r}, v{S+r}, s{sC}, v{mreg}")
    for r in range(4): g(f"v_exp_f32 v{S+r}, v{S+r}")
    g(f"v_cvt_pk_bf16_f32 v{P}, v{S}, v{S+1}\nv_cvt_pk_bf16_f32 v{P+1}, v{S+2}, v{S+3}")
    def sh(dst, src, n): return f"v_mov_b32_dpp v{dst}, v{src} row_shl:{n} row_mask:0xf bank_mask:0xf bound_ctrl:0"
    g(sh(P + 2, P, 2)); g(sh(P + 3, P + 1, 2))
    rest = []
    for u in range(1, 4):
        rest += [sh(P + 4 * u, P, 4 * u), sh(P + 4 * u + 1, P + 1, 4 * u), sh(P + 4 * u + 2, P, 4 * u + 2), sh(P + 4 * u + 3, P + 1, 4 * u + 2)]
    return rest

def pv(u, tau): return mfma32(D + 4 * tau, ar(128 + 32 * u + 4 * tau, 4), vr(P + 4 * u, 4), "0" if u == 0 else vr(D + 4 * tau, 4))
M2 = "0x00030003"
def exec_m2(): return [f"s_mov_b32 exec_lo, {M2}", f"s_mov_b32 exec_hi, {M2}"]

def attn_final():
    a = g.lab("Laf"); b = g.lab("Laf")
    g(f"s_cmp_gt_u32 s{sW}, 1\ns_cbranch_scc1 {a}")
    for w in range(4):
        g(f"ds_read_b64 {vr(T+4+2*w,2)}, v{vAOR} offset:{1024*w}")
    g(f"""s_waitcnt lgkmcnt(2)
    v_pk_add_f32 {vr(T+4,2)}, {vr(T+4,2)}, {vr(T+6,2)}
    s_waitcnt lgkmcnt(0)
    v_pk_add_f32 {vr(T+8,2)}, {vr(T+8,2)}, {vr(T+10,2)}
    v_pk_add_f32 {vr(T+4,2)}, {vr(T+4,2)}, {vr(T+8,2)}
    v_cvt_pk_bf16_f32 v{T+4}, v{T+4}, v{T+5}""")
    lstore("buffer_store_dword", f"v{T+4}", vL4, f"s{sAO}")
    g(f"s_branch {b}\n{a}:")
    g(f"s_cmp_lg_u32 s{sW}, 2\ns_cbranch_scc1 {b}")
    g(f"""ds_read_b128 {vr(T+4,4)}, v{vMR} offset:32
    s_mov_b64 exec, 3""")
    lstore("buffer_store_dword", f"v{T+2}", vSS, f"s{sAS}")
    g(f"""s_waitcnt lgkmcnt(0)
    v_pk_add_f32 {vr(T+4,2)}, {vr(T+4,2)}, {vr(T+6,2)}
    v_add_f32 v{T+4}, v{T+4}, v{T+5}""")
    lstore("buffer_store_dword", f"v{T+4}", vSS, f"s{sAS}", 16)
    g(f"s_mov_b64 exec, -1\n{b}:")

def set_pass_offsets():
    g(f"""s_lshl_b32 s{t0}, s{sPass}, 14
    s_add_u32 s{sOB}, s{sGB}, s{t0}
    s_add_u32 s{sOB}, s{sOB}, {OB0}
    s_lshl_b32 s{t0}, s{sPass}, 9
    s_add_u32 s{sSB}, s{sGB}, s{t0}
    s_add_u32 s{sSB}, s{sSB}, {SB0}
    s_mul_i32 s{t0}, s{sPass}, {XB3-XB1}
    s_add_u32 s{sXB}, s{sGB}, s{t0}
    s_mul_i32 s{t0}, s{sPass}, 5120
    s_add_u32 s{sHB}, s{sGB}, s{t0}
    s_add_u32 s{sHB}, s{sHB}, {HB0}
    s_and_b32 s{t0}, s{sI}, 1
    s_lshl_b32 s{t0}, s{t0}, 1
    s_add_u32 s{t1}, s{t0}, s{sW}
    s_lshl_b32 s{t1}, s{t1}, 12
    s_bfe_u32 s{t2}, s{sI}, 0x20001
    s_lshr_b32 s{t3}, s{sI}, 3
    s_lshl_b32 s{sAO}, s{t2}, 2
    s_add_u32 s{sAO}, s{sAO}, s{t3}
    s_lshl_b32 s{sAO}, s{sAO}, 8
    s_add_u32 s{sAO}, s{sAO}, s{t1}
    s_add_u32 s{sAO}, s{sAO}, s{sOB}
    s_lshl_b32 s{t0}, s{t0}, 2
    s_add_u32 s{t0}, s{t0}, s{t2}
    s_lshl_b32 s{t0}, s{t0}, 5
    s_lshl_b32 s{t3}, s{t3}, 2
    s_add_u32 s{t0}, s{t0}, s{t3}
    s_add_u32 s{sAS}, s{t0}, s{sSB}""")

def r_stage(inst_extra, with_b2, final_ok):
    skip = g.lab("Lrs"); loop = g.lab("Lrl")
    g(f"s_cmp_lg_u32 s{sW}, 3\ns_cbranch_scc1 {skip}")
    if final_ok:
        go = g.lab("Lrg")
        g(f"""s_cmp_eq_u32 s{sPass}, 0
        s_cbranch_scc1 {go}
        s_bfe_u32 s{t0}, s{sRc}, 0x30006
        s_cmp_lg_u32 s{t0}, s{sG}
        s_cbranch_scc1 {skip}
        {go}:""")
    g(f"s_add_u32 s{t0}, s{sXRd}, {inst_extra}")
    g(f"{loop}:")
    for k in range(8):
        g(f"buffer_load_dwordx2 {vr(QO+2*k,2)}, v{vL8}, {sd(sWS)}, s{t0} offen offset:{512*k} sc1")
    def pa(a, b): return f"v_pk_add_f32 {vr(QO+2*a,2)}, {vr(QO+2*a,2)}, {vr(QO+2*b,2)}"
    g("s_waitcnt vmcnt(4)")
    g(pa(0, 1)); g(pa(2, 3))
    g("s_waitcnt vmcnt(0)")
    g(pa(4, 5)); g(pa(6, 7)); g(pa(0, 2)); g(pa(4, 6)); g(pa(0, 4))
    g(f"v_cmp_u_f32 vcc, v{QO}, v{QO+1}")
    g(f"v_cvt_pk_bf16_f32 v{QO+2}, v{QO}, v{QO+1}")
    retry(loop)
    def unp(dst, src): g(f"v_lshlrev_b32 v{dst}, 16, v{src}\nv_and_b32 v{dst+1}, 0xffff0000, v{src}")
    unp(QO, QO + 2)
    if with_b2:
        g(f"v_pk_add_f32 {vr(QO,2)}, {vr(QO,2)}, {vr(vB2,2)}")
        g(f"v_cvt_pk_bf16_f32 v{QO+2}, v{QO}, v{QO+1}")
        unp(QO, QO + 2)
    g(f"v_pk_add_f32 {vr(QO,2)}, {vr(QO,2)}, {vr(vRES,2)}")
    g(f"v_cvt_pk_bf16_f32 v{QO+2}, v{QO}, v{QO+1}")
    if final_ok:
        fin = g.lab("Lrf")
        g(f"s_cmp_lg_u32 s{sPass}, 0\ns_cbranch_scc1 {fin}")
        g(f"s_add_u32 s{t0}, s{sGB}, s{sRc}")
        g(f"s_add_u32 s{t0}, s{t0}, {XB2}")
        lstore("buffer_store_dword", f"v{QO+2}", vRS, f"s{t0}")
        unp(vRES, QO + 2)
        g(f"s_branch {skip}\n{fin}:")
        g(f"buffer_store_dword v{QO+2}, v{vRS}, {sd(sOUT)}, s{sRc} offen")
    else:
        g(f"s_add_u32 s{t0}, s{sXB}, s{sRc}")
        lstore("buffer_store_dword", f"v{QO+2}", vRS, f"s{t0}")
        unp(vRES, QO + 2)
    g(f"{skip}:")

EVEN = "0x55555555"
g(f"""
s_cmp_ge_u32 s2, 256
s_cbranch_scc1 LEND
s_load_dwordx16 s[4:19], s[0:1], 0
s_load_dwordx8 s[20:27], s[0:1], 64
s_load_dwordx2 s[28:29], s[0:1], 96
v_and_b32 v{vL}, 63, v0
v_lshrrev_b32 v{T}, 6, v0
s_and_b32 s{sG}, s2, 7
v_readfirstlane_b32 s{sW}, v{T}
s_lshr_b32 s{sI}, s2, 3
s_mov_b32 s94, 0x000f000f
s_mov_b32 s95, 0x000f000f
v_and_b32 v{T+1}, 15, v{vL}
v_lshrrev_b32 v{T+2}, 4, v{vL}
v_lshlrev_b32 v{vL16}, 4, v{vL}
v_mov_b32 v{T+4}, -1
v_mov_b32 v{T+5}, -1
v_mov_b32 v{T+6}, -1
v_mov_b32 v{T+7}, -1
s_mul_i32 s{s3}, s{sW}, 160
s_cmp_eq_u32 s{sW}, 3
s_cselect_b32 s{s3}, 448, s{s3}
s_cmp_ge_u32 s{sW}, 2
s_cselect_b32 s{sPass}, 0x40000000, 0
s_lshl_b32 s{t0}, s{s3}, 1
v_mul_u32_u24 v{vXF}, 1152, v{T+1}
v_add_u32 v{vXF}, s{t0}, v{vXF}
v_lshl_add_u32 v{vXF}, v{T+2}, 4, v{vXF}
s_add_u32 s{t0}, s{sPass}, 256
v_add_u32 v{vXF2}, s{t0}, v{vXF}
v_lshrrev_b32 v{T+3}, 1, v{vL}
v_lshlrev_b32 v{vWQD}, 13, v{T+3}
v_and_b32 v{T+3}, 1, v{vL}
v_lshl_add_u32 v{vWQD}, v{T+3}, 4, v{vWQD}
v_cmp_eq_u32 vcc, 4, v{T+1}
v_mov_b32 v{T+8}, 0x3f803f80
v_mov_b32 v{T+9}, 0
v_cndmask_b32 v{XF}, v{T+9}, v{T+8}, vcc
""")
for k in range(1, 20): g(f"v_mov_b32 v{XF+k}, v{XF}")
for j in range(4):
    g(f"""v_add_u32 v{T+3}, {4*j}, v{T+2}
    v_xor_b32 v{T+3}, v{T+3}, v{T+1}
    v_lshlrev_b32 v{T+3}, 4, v{T+3}
    v_lshl_add_u32 v{vKD+j}, v{T+2}, 8, v{T+3}""")
g(f"""
v_lshlrev_b32 v{vQS}, 10, v{T+2}
v_lshl_add_u32 v{vQS}, v{T+1}, 1, v{vQS}
s_lshl_b32 s{t0}, s{sI}, 5
v_add_u32 v{vQS}, s{t0}, v{vQS}
s_and_b32 s{t0}, s{sI}, 1
s_lshl_b32 s{t1}, s{sG}, 1
s_add_u32 s{t1}, s{t1}, s{t0}
s_lshl_b32 s{t1}, s{t1}, 21
s_bfe_u32 s{t2}, s{sI}, 0x20001
s_lshl_b32 s{t2}, s{t2}, 25
s_add_u32 s{t1}, s{t1}, s{t2}
s_lshr_b32 s{t2}, s{sI}, 3
s_lshl_b32 s{t2}, s{t2}, 17
s_add_u32 s{t1}, s{t1}, s{t2}
s_add_u32 s{t3}, s{t1}, {6144*256}
s_mul_i32 s{sU}, s2, 17
s_add_u32 s{sU}, s{sU}, s{sW}
s_and_b32 s{sU}, s{sU}, 127
s_lshl_b32 s{sU}, s{sU}, 10
s_lshl_b32 s{t0}, s{sG}, 10
s_lshl_b32 s{t1}, s{sI}, 5
s_add_u32 s{t0}, s{t0}, s{t1}
s_sub_u32 s{t1}, {576*8192}, s{t0}
s_lshl_b32 s{sGB}, s{sG}, 16
s_waitcnt lgkmcnt(0)
""")
srd(sWS, 28, 29, 0, (4 << 20) if DEBUG else WSREC)
srd(sX0, 4, 5, 0, 4608)
srd(sWQ, 10, 11, f"s{t0}", f"s{t1}")
srd(sK, 6, 7, f"s{t3}", 131072)
nc = g.lab("Lnc")
g(f"""s_cmp_lg_u32 s{sW}, 0
s_cbranch_scc1 {nc}
s_lshl_b32 s{t0}, s2, 12""")
for n in range(4):
    g(f"buffer_store_dwordx4 {vr(T+4,4)}, v{vL16}, {sd(sWS)}, s{t0} offen offset:{1024*n} sc1")
g(f"""s_lshl_b32 s{t0}, s{sG}, 12
s_add_u32 s{t0}, s{t0}, {QB0}
s_mov_b32 exec_lo, {EVEN}
s_mov_b32 exec_hi, {EVEN}
buffer_store_dword v{T+4}, v{vQS}, {sd(sWS)}, s{t0} offen sc1
s_mov_b64 exec, -1
{nc}:""")
x_loads(sX0, "0", "", "x")
g(f"s_lshl_b32 s{t0}, s{s3}, 13\ns_mul_i32 s{t1}, s{sW}, {WREG}")
for n in range(5):
    g(f"s_add_u32 m0, s{t1}, {32768+1024*n}")
    if n == 4: g(f"s_add_u32 s{t0}, s{t0}, s{sPass}")
    g(f"s_add_u32 s{t2}, s{t0}, {32*8192*n}")
    g.vmem(f"buffer_load_dwordx4 v{vWQD}, {sd(sWQ)}, s{t2} offen nt lds", "wq")
g(f"s_mov_b32 s{sBud}, s{s3}")

def issue_tile(n):
    srdb = sK if n < 8 else sV
    for j in range(4):
        g(f"s_mul_i32 s{t1}, s{sW}, {WREG}" if j == 0 else f"s_add_u32 m0, m0, 1024")
        if j == 0: g(f"s_add_u32 m0, s{t1}, {4096*(n%8)}")
        else: g(f"s_and_b32 s{sU}, s{sU}, 0x1ffff")
        g.vmem(f"buffer_load_dwordx4 v{vKD+j}, {sd(srdb)}, s{sU} offen nt lds", f"t{n}")
        g(f"s_add_u32 s{sU}, s{sU}, 4096")
    g(f"s_and_b32 s{sU}, s{sU}, 0x1ffff")

issue_tile(0)
srd(sV, 8, 9, f"s{t3}", 131072)
issue_tile(1)
g(f"""
s_mul_i32 s{t0}, s{sG}, {512*1152}
s_lshl_b32 s{t1}, s{sI}, 6
s_add_u32 s{t0}, s{t0}, s{t1}
s_sub_u32 s{t1}, {4096*1152}, s{t0}
s_cmp_lt_u32 s{sI}, 18
s_cselect_b32 s{t1}, s{t1}, 0
""")
srd(sWO, 12, 13, f"s{t0}", f"s{t1}")
g(f"""
s_lshl_b32 s{sXO}, s{sI}, 12
s_lshl_b32 s{t2}, s{sG}, 9
s_add_u32 s{sXO}, s{sXO}, s{t2}
s_add_u32 s{sXO}, s{sXO}, {XR}
s_sub_u32 s{s3}, s{sI}, 14
s_cmp_ge_u32 s{sI}, 14
s_cselect_b32 s{s3}, s{s3}, 0
s_mul_i32 s{t0}, s{sG}, 1152
s_lshl_b32 s{t1}, s{s3}, 6
s_add_u32 s{t0}, s{t0}, s{t1}
s_sub_u32 s{t1}, {576*9216}, s{t0}
s_cmp_ge_u32 s{sI}, 14
s_cselect_b32 s{t1}, s{t1}, 0
""")
srd(sW1, 16, 17, f"s{t0}", f"s{t1}")
srd(sWSF, 18, 19, f"s{t0}", 64)
g(f"""
s_lshl_b32 s{sXRd}, s{s3}, 12
s_add_u32 s{sXRd}, s{sXRd}, {XR}
s_sub_u32 s{t3}, s{sI}, 4
s_sub_u32 s{t2}, s{sI}, 18
s_cmp_lt_u32 s{t2}, 4
s_cselect_b32 s{t3}, s{t3}, -1
s_cmp_lt_u32 s{sI}, 14
s_cselect_b32 s{t3}, s{sI}, s{t3}
s_max_i32 s{t2}, s{t3}, 0
s_mul_i32 s{t0}, s{sG}, {576*1152}
s_lshl_b32 s{t1}, s{t2}, 6
s_add_u32 s{t0}, s{t0}, s{t1}
s_sub_u32 s{t1}, {4608*1152}, s{t0}
""")
srd(sW2, 20, 21, f"s{t0}", f"s{t1}")
srd(sWSS, 22, 23, 0, 1152)
g(f"s_mov_b32 s{sRB}, s{sBud}\ns_mov_b32 s{sOOR}, s{sPass}")
srd(sOUT, 24, 25, 0, 4608)
srd(sDBG, 26, 27, 0, 256)
g(f"""
s_mov_b32 s{sCF2}, s{t3}
s_lshl_b32 s{sXF2}, s{t2}, 12
s_lshl_b32 s{t0}, s{sG}, 9
s_add_u32 s{sXF2}, s{sXF2}, s{t0}
s_add_u32 s{sXF2}, s{sXF2}, {XR+XI}
s_lshl_b32 s{sRc}, s{s3}, 6
s_getreg_b32 s{sFlag}, hwreg(HW_REG_XCC_ID, 0, 4)
s_or_b32 s{sFlag}, s{sFlag}, 16
s_mov_b32 s{sInv}, {f32(1/576):#x}
s_mov_b32 s{sEps}, {f32(1e-5):#x}
s_mov_b32 s{sC}, {f32(128**-0.5*math.log2(math.e)):#x}
s_mov_b32 s{sBud}, 20000
s_mov_b32 s{sPass}, 0
v_mul_u32_u24 v{vRS}, 1152, v{T+2}
v_lshl_add_u32 v{vHS}, v{T+1}, 1, v{vRS}
v_lshl_add_u32 v{vRS}, v{T+1}, 2, v{vRS}
s_lshl_b32 s{t0}, s{sW}, 5
v_add_u32 v{vHS}, s{t0}, v{vHS}
v_lshlrev_b32 v{T+3}, 1, v{T+1}
v_add_u32 v{T+3}, s{t0}, v{T+3}
v_lshlrev_b32 v{T+8}, 2, v{T+1}
""")
g.vmem(f"buffer_load_ushort v{vB1}, v{T+3}, {sd(sWSF)}, 0 offen", "sm")
g.vmem(f"buffer_load_dword v{vB2}, v{T+8}, {sd(sWSS)}, s{sRc} offen", "sm")
g.vmem(f"buffer_load_dword v{vRES}, v{vRS}, {sd(sX0)}, s{sRc} offen", "sm")
issue_tile(2)
set_pass_offsets()
g(f"""
s_mul_i32 s{t1}, s{sW}, {WREG}
v_lshlrev_b32 v{vL4}, 2, v{vL}
v_lshlrev_b32 v{vL8}, 3, v{vL}
v_lshl_add_u32 v{T+3}, v{T+1}, 8, s{t1}
""")
for ks in range(4):
    g(f"""v_add_u32 v{T+8}, {4*ks}, v{T+2}
    v_xor_b32 v{T+8}, v{T+8}, v{T+1}
    v_lshl_add_u32 v{vKR+ks}, v{T+8}, 4, v{T+3}""")
g(f"""
v_lshrrev_b32 v{T+8}, 2, v{vL}
v_lshl_add_u32 v{T+3}, v{T+8}, 8, s{t1}
v_and_b32 v{T+9}, 1, v{vL}
v_lshl_add_u32 v{T+3}, v{T+9}, 3, v{T+3}
v_bfe_u32 v{T+9}, v{vL}, 1, 1
v_xor_b32 v{T+9}, v{T+9}, v{T+8}
""")
for tau in range(8):
    g(f"v_xor_b32 v{T+10}, {2*tau}, v{T+9}\nv_lshl_add_u32 v{vVR+tau}, v{T+10}, 4, v{T+3}")
g(f"""
v_and_b32 v{T+9}, 3, v{vL}
v_lshlrev_b32 v{T+9}, 3, v{T+9}
v_add_u32 v{T+9}, s{t1}, v{T+9}
v_bfe_u32 v{T+10}, v{vL}, 2, 2
v_lshl_add_u32 v{T+10}, v{T+2}, 3, v{T+10}
v_lshl_add_u32 v{vT32a}, v{T+10}, 5, v{T+9}
v_lshl_add_u32 v{vT64a}, v{T+10}, 6, v{T+9}
v_and_b32 v{T+9}, 3, v{vL}
v_lshlrev_b32 v{T+9}, 4, v{T+9}
v_mul_u32_u24 v{vWD1}, 1152, v{T+8}
v_add_u32 v{vWD1}, v{vWD1}, v{T+9}
v_mul_u32_u24 v{vWD9}, 9216, v{T+8}
v_add_u32 v{vWD9}, v{vWD9}, v{T+9}
s_lshl_b32 s{t0}, s{sW}, 9
s_add_u32 s{t0}, s{t0}, {PA}
v_lshlrev_b32 v{vPW}, 6, v{T+1}
v_lshl_add_u32 v{vPW}, v{T+2}, 4, v{vPW}
v_add_u32 v{vPW}, s{t0}, v{vPW}
v_add_u32 v{vPW1}, s{t0}, v{vL4}
s_lshl_b32 s{t0}, s{sW}, 8
s_add_u32 s{t0}, s{t0}, {PA}
v_add_u32 v{vPR}, s{t0}, v{vL4}
v_bfe_u32 v{T+10}, v{vL}, 2, 1
v_lshl_add_u32 v{vPR4}, v{T+10}, 8, v{T+9}
v_bfe_u32 v{T+10}, v{vL}, 3, 2
v_lshl_add_u32 v{vPR4}, v{T+10}, 6, v{vPR4}
v_add_u32 v{vPR4}, {PA}, v{vPR4}
s_lshl_b32 s{t0}, s{sW}, 3
s_add_u32 s{t0}, s{t0}, {STA}
v_lshlrev_b32 v{vSTW}, 5, v{T+1}
v_add_u32 v{vSTW}, s{t0}, v{vSTW}
v_add_u32 v{T+10}, 4, v{vSTW}
v_cmp_gt_u32 vcc, 16, v{vL}
v_mov_b32 v{T+11}, {DUMP}
v_cndmask_b32 v{vSTW}, v{vSTW}, v{T+10}, vcc
v_and_b32 v{T+10}, 44, v{vL}
v_cmp_eq_u32 vcc, 0, v{T+10}
v_lshlrev_b32 v{vSTR}, 5, v{T+2}
v_add_u32 v{vSTR}, {STA}, v{vSTR}
v_cndmask_b32 v{vSTW}, v{T+11}, v{vSTW}, vcc
s_lshl_b32 s{t0}, s{sW}, 10
s_add_u32 s{t0}, s{t0}, {AO}
v_and_b32 v{T+9}, 1, v{vL}
v_lshlrev_b32 v{vAOW}, 9, v{T+9}
v_lshl_add_u32 v{vAOW}, v{T+2}, 4, v{vAOW}
v_add_u32 v{vAOW}, s{t0}, v{vAOW}
s_lshl_b32 s{t0}, s{sW}, 9
s_add_u32 s{t0}, s{t0}, {AO}
v_add_u32 v{vAOR}, s{t0}, v{vL8}
v_lshlrev_b32 v{vMR}, 4, v{T+9}
v_add_u32 v{vMR}, {ME}, v{vMR}
s_lshl_b32 s{t0}, s{sW}, 2
v_add_u32 v{vMW}, s{t0}, v{vMR}
v_lshlrev_b32 v{vSS}, 7, v{T+9}
s_bfe_u32 s{t0}, s{sI}, 0x20001
s_lshl_b32 s{t0}, s{t0}, 10
s_and_b32 s{t1}, s{sI}, 1
s_lshl_b32 s{t1}, s{t1}, 9
s_add_u32 s{t0}, s{t0}, s{t1}
v_lshlrev_b32 v{vQF}, 8, v{T+9}
v_lshl_add_u32 v{vQF}, v{T+2}, 4, v{vQF}
v_add_u32 v{vQF}, s{t0}, v{vQF}
s_lshl_b32 s{t0}, s{sW}, 12
v_lshlrev_b32 v{vOF}, 8, v{T+1}
v_lshl_add_u32 v{vOF}, v{T+2}, 4, v{vOF}
v_add_u32 v{vOF}, s{t0}, v{vOF}
s_lshl_b32 s{t0}, s{sW}, 7
v_lshlrev_b32 v{vSF}, 5, v{T+2}
v_add_u32 v{vSF}, s{t0}, v{vSF}
v_mov_b32 v{vSTAMP}, 0
""")
for n in range(3, DEPTH): issue_tile(n)
stamp()
g.wait_vm("wq")
nf = g.lab("Lnf")
g(f"""s_cmp_lg_u32 s{sW}, 0
s_cbranch_scc1 {nf}
v_mov_b32 v{T}, s{sFlag}
v_mov_b32 v{T+1}, s2
s_mov_b64 exec, 1
buffer_store_byte v{T}, v{T+1}, {sd(sDBG)}, 0 offen sc1
s_mov_b64 exec, -1
{nf}:""")
for ks in range(5):
    for h in range(2):
        g(f"ds_read_b64_tr_b16 {vr(WQ+4*ks+2*h,2)}, v{vT32a} offset:{32768+1024*ks+128*h}")
for k in range(4): g(f"v_mov_b32 v{T+4+k}, 0x3f803f80")
g("s_waitcnt lgkmcnt(0)")
m4_mms(WQ, 1, True, PA, STA, None, PC)
nq = g.lab("Lnq")
g(f"s_cmp_lg_u32 s{sW}, 0\ns_cbranch_scc1 {nq}")
m4_final_ln(PA, STA, vCSQ, PC)
g(f"v_mul_f32 v{T}, v{T}, v{T+5}")
pack_pairs(T, T)
g(f"""s_lshl_b32 s{t0}, s{sG}, 12
s_add_u32 s{t0}, s{t0}, {QB0}
s_mov_b32 exec_lo, {EVEN}
s_mov_b32 exec_hi, {EVEN}
buffer_store_dword v{T}, v{vQS}, {sd(sWS)}, s{t0} offen sc1
s_mov_b64 exec, -1
{nq}:""")
stamp()
def tail_issue(n):
    if n == 16: wdma(sWO, vWD1, 1152, 128, LWO, 0, 4, "wo")
    if n == 17: wdma(sWO, vWD1, 1152, 128, LWO, 4, 8, "wo")
    if n == 18: wdma(sW1, vWD9, 9216, 160, LW1, 0, 5, "w1")
    if n == 19: wdma(sW1, vWD9, 9216, 160, LW1, 5, 10, "w1")

QISS = 8 - DEPTH
def tq_loads(tag):
    g(f"s_lshl_b32 s{t0}, s{sG}, 12\ns_add_u32 s{t0}, s{t0}, {QB0}")
    g.vmem(f"buffer_load_dword v{T+12}, v{vL4}, {sd(sDBG)}, 0 offen sc1", tag)
    q_loads(f"s{t0}", tag)

prest = None
for n in range(16):
    g.wait_vm(f"t{n}")
    if n < 8:
        for ks in range(4):
            g(f"ds_read_b128 {ar(16*n+4*ks,4)}, v{vKR+ks} offset:{4096*n}")
    else:
        t = n - 8
        for tau in range(8):
            g(f"ds_read_b64_tr_b16 {ar(128+32*(t>>1)+4*tau+2*(t&1),2)}, v{vVR+tau} offset:{4096*t}")
    if n == QISS: tq_loads("tq")
    nn = n + DEPTH
    if nn < 16: issue_tile(nn)
    else: tail_issue(nn)
    if n == 2:
        g(f"""v_lshlrev_b32 v{vB1}, 16, v{vB1}
        v_and_b32 v{vB2+1}, 0xffff0000, v{vB2}
        v_lshlrev_b32 v{vB2}, 16, v{vB2}
        v_and_b32 v{vRES+1}, 0xffff0000, v{vRES}
        v_lshlrev_b32 v{vRES}, 16, v{vRES}""")
    if n == 8:
        stamp()
        loop = g.lab("Ltq"); first = g.lab("Ltq")
        g(f"s_branch {first}\n{loop}:")
        sv = list(g.vm)
        tq_loads(None); g("s_waitcnt vmcnt(0)")
        g.vm = sv
        g(f"{first}:")
        g.wait_vm("tq")
        for x in chk_ops(list(range(QO, QO + 16)), T): g(x)
        g(f"""v_and_b32 v{T+1}, 0x10101010, v{T+12}
        s_mov_b32 s{t0}, 0x10101010
        v_cmp_ne_u32 {sMT}, s{t0}, v{T+1}
        s_or_b64 vcc, vcc, {sMT}""")
        retry(loop)
        g(f"""s_and_b32 s{t0}, s{sG}, 3
        s_lshl_b32 s{t0}, s{t0}, 3
        v_lshrrev_b32 v{T+1}, s{t0}, v{T+12}
        v_and_b32 v{T+1}, 0xff, v{T+1}
        v_cmp_ne_u32 vcc, s{sFlag}, v{T+1}
        s_mov_b32 s{t0}, {EVEN}
        s_lshr_b32 s{t1}, s{sG}, 2
        s_lshl_b32 s{t0}, s{t0}, s{t1}
        s_and_b32 s{t1}, vcc_lo, s{t0}
        s_and_b32 s{t2}, vcc_hi, s{t0}
        s_or_b32 s{t1}, s{t1}, s{t2}
        s_mov_b32 s{sWSF}, s{sWS}
        s_mov_b32 s{sWSF+1}, s{sWS+1}
        s_mov_b32 s{sWSS}, s{sWS}
        s_mov_b32 s{sWSS+1}, s{sWS+1}
        s_cmp_eq_u32 s{t1}, {1 if OPT['FORCE_SLOW'] else 0}
        s_cselect_b32 s{sWSF+2}, {WSREC}, 0
        s_cselect_b32 s{sWSS+2}, 0, {WSREC}
        s_waitcnt lgkmcnt(0)""")
        qk(None)
        g(f"""s_mov_b64 exec, 3
        ds_write_b32 v{vMW}, v{T}
        s_mov_b64 exec, -1
        s_waitcnt lgkmcnt(0)
        s_barrier
        ds_read_b128 {vr(T+4,4)}, v{vMR}
        s_waitcnt lgkmcnt(0)
        v_max3_f32 v{T}, v{T+4}, v{T+5}, v{T+6}
        v_max_f32 v{T}, v{T}, v{T+7}
        v_mul_f32 v{T+2}, s{sC}, v{T}
        v_mul_f32 v{T+3}, -1.0, v{T+2}""")
        for x in softmax_p(T + 3): g(x)
        g(f"v_add_f32 v{S}, v{S}, v{S+1}\nv_add_f32 v{S+2}, v{S+2}, v{S+3}\nv_add_f32 v{S}, v{S}, v{S+2}")
        for x in red_steps("v_add_f32", S, S + 1): g(x)
        g(f"""s_mov_b64 exec, 3
        ds_write_b32 v{vMW}, v{S} offset:32
        s_mov_b64 exec, -1""")
        stamp()
    if n > 8 and n % 2 == 1:
        u = (n - 9) // 2
        g("s_waitcnt lgkmcnt(0)")
        if u < 3:
            for tau in range(8): g(pv(u, tau))
        else:
            stamp()
            wr = [f"ds_write_b128 v{vAOW}, {vr(D+4*tau,4)} offset:{64*tau}" for tau in range(8)]
            for tau in range(8): g(pv(u, tau))
            for x in exec_m2(): g(x)
            for x in wr: g(x)
            g("s_mov_b64 exec, -1")
g("s_waitcnt lgkmcnt(0)\ns_barrier")
attn_final()
stamp()
nw = g.lab("Lnw")
g(f"s_cmp_lt_i32 s{sCF2}, 14\ns_cbranch_scc1 {nw}")
sv = list(g.vm)
wdma(sW2, vWD1, 1152, 160, LW2, 0, 10, None)
g.vm = sv
g(f"{nw}:")

g("LTOP:")
noO = g.lab("LnoO")
g(f"s_cmp_ge_u32 s{sI}, 18\ns_cbranch_scc1 {noO}")
np_ = g.lab("Lnp")
g(f"s_cmp_lg_u32 s{sPass}, 0\ns_cbranch_scc1 {np_}")
g.wait_vm("wo")
prep64(WO, LWO, 4)
g(f"{np_}:")
loop = g.lab("Lo")
g(f"{loop}:")
for ks in range(4):
    g(f"buffer_load_dwordx4 {vr(QO+4*ks,4)}, v{vOF}, {sd(sWS)}, s{sOB} offen offset:{64*ks} sc1")
g(f"buffer_load_dwordx4 {vr(ST,4)}, v{vSF}, {sd(sWS)}, s{sSB} offen sc1")
g(f"buffer_load_dwordx4 {vr(ST+4,4)}, v{vSF}, {sd(sWS)}, s{sSB} offen offset:16 sc1")
g("s_waitcnt vmcnt(0)")
om = [mfma32(D + 4 * t, vr(QO + 4 * ks, 4), vr(WO + 16 * t + 4 * ks, 4), "0" if ks == 0 else vr(D + 4 * t, 4)) for t in range(2) for ks in range(4)]
weave(om[:3], chk_ops(list(range(QO, QO + 16)) + list(range(ST, ST + 8)), T), [5, 5, 5])
retry(loop)
sc = [f"v_max3_f32 v{T}, v{ST}, v{ST+1}, v{ST+2}", f"v_max_f32 v{T}, v{T}, v{ST+3}"]
sc += [f"v_sub_f32 v{ST+k}, v{ST+k}, v{T}" for k in range(4)]
sc += [f"v_exp_f32 v{ST+k}, v{ST+k}" for k in range(4)]
sc += [f"v_pk_mul_f32 {vr(ST+4,2)}, {vr(ST+4,2)}, {vr(ST,2)}", f"v_pk_fma_f32 {vr(ST+4,2)}, {vr(ST+6,2)}, {vr(ST+2,2)}, {vr(ST+4,2)}",
       f"v_add_f32 v{T}, v{ST+4}, v{ST+5}", f"v_rcp_f32 v{T}, v{T}"]
sc += [f"v_pk_mul_f32 {vr(D,2)}, {vr(D,2)}, {vr(ST,2)}", f"v_pk_fma_f32 {vr(D,2)}, {vr(D+2,2)}, {vr(ST+2,2)}, {vr(D,2)}",
       f"v_add_f32 v{D}, v{D}, v{D+1}", f"v_mul_f32 v{D}, v{D}, v{T}", f"ds_write_b32 v{vPW1}, v{D} offset:{PB-PA}"]
weave(om[3:], sc, [3, 4, 4, 4, 4])
g(f"""v_pk_mul_f32 {vr(D+4,2)}, {vr(D+4,2)}, {vr(ST,2)}
v_pk_fma_f32 {vr(D+4,2)}, {vr(D+6,2)}, {vr(ST+2,2)}, {vr(D+4,2)}
v_add_f32 v{D+4}, v{D+4}, v{D+5}
v_mul_f32 v{D+4}, v{D+4}, v{T}
ds_write_b32 v{vPW1}, v{D+4} offset:{PB-PA+256}
s_waitcnt lgkmcnt(0)
s_barrier""")
x_final(PB, f"s{sXO}")
stamp()
nw = g.lab("Lnw")
g(f"s_cmp_lg_u32 s{sPass}, 0\ns_cbranch_scc1 {nw}\ns_cmp_ge_u32 s{sI}, 14\ns_cbranch_scc1 {nw}")
wdma(sW2, vWD1, 1152, 160, LW2, 0, 10, None)
g(f"{nw}:")
g(f"{noO}:")
noR = g.lab("LnoR")
g(f"s_cmp_lt_u32 s{sI}, 14\ns_cbranch_scc1 {noR}")
np_ = g.lab("Lnp")
g(f"s_cmp_lg_u32 s{sPass}, 0\ns_cbranch_scc1 {np_}")
g("s_waitcnt vmcnt(0)")
prep64(W1, LW1, 5)
for k in range(4): g(f"v_mov_b32 v{T+4+k}, 0x3f803f80")
for t in range(2):
    for ks in range(5):
        g(mm(D + 12 + 4 * t, wfrag(W1, t, ks), vr(T + 4, 4), ks))
g(f"s_mov_b64 exec, {sM4}")
for t in range(2): g(f"ds_write_b128 v{vPW}, {vr(D+12+4*t,4)} offset:{PC-PA+256*t}")
g(f"""s_mov_b64 exec, -1
s_waitcnt lgkmcnt(0)
s_barrier
ds_read2st64_b32 {vr(D,2)}, v{vPR} offset0:{(PC-PA)//256} offset1:{(PC-PA)//256+2}
ds_read2st64_b32 {vr(D+2,2)}, v{vPR} offset0:{(PC-PA)//256+4} offset1:{(PC-PA)//256+6}
s_waitcnt lgkmcnt(0)
v_add_f32 v{D}, v{D}, v{D+1}
v_add_f32 v{D+2}, v{D+2}, v{D+3}
v_add_f32 v{vCS1}, v{D}, v{D+2}
{np_}:""")
r_stage(0, False, False)
stamp()
loop = g.lab("Lf1")
g(f"{loop}:")
x_loads(sWS, f"s{sXB}", " sc1")
g("s_waitcnt vmcnt(0)")
m4_mms(W1, 2, True, PA, STB, loop)
nf = g.lab("Lnf")
g(f"s_cmp_gt_u32 s{sW}, 1\ns_cbranch_scc1 {nf}")
m4_final_ln(PA, STB, vCS1)
c0 = -2 * math.sqrt(2 / math.pi) * math.log2(math.e)
g(f"""v_fma_f32 v{T}, v{T}, v{T+5}, v{vB1}
v_mov_b32 v{T+2}, {f32(c0):#x}
v_mul_f32 v{T+1}, v{T}, v{T}
v_fmac_f32 v{T+2}, {f32(c0*0.044715):#x}, v{T+1}
v_mul_f32 v{T+2}, v{T+2}, v{T}
v_exp_f32 v{T+2}, v{T+2}
s_add_u32 s{t0}, s{sHB}, s{sRc}
v_add_f32 v{T+2}, 1.0, v{T+2}
v_rcp_f32 v{T+2}, v{T+2}
s_nop 0
v_mul_f32 v{T}, v{T}, v{T+2}""")
pack_pairs(T, T)
g(f"s_mov_b32 exec_lo, {EVEN}\ns_mov_b32 exec_hi, {EVEN}")
lstore("buffer_store_dword", f"v{T}", vHS, f"s{t0}")
g(f"s_mov_b64 exec, -1\n{nf}:")
stamp()
g(f"{noR}:")
noF2 = g.lab("LnoF2")
g(f"s_cmp_lt_i32 s{sCF2}, 0\ns_cbranch_scc1 {noF2}")
np_ = g.lab("Lnp")
g(f"s_cmp_lg_u32 s{sPass}, 0\ns_cbranch_scc1 {np_}")
g("s_waitcnt vmcnt(0)")
prep64(W2, LW2, 5)
g(f"{np_}:")
loop = g.lab("Lf2")
g(f"{loop}:")
x_loads(sWS, f"s{sHB}", " sc1")
g("s_waitcnt vmcnt(0)")
m4_mms(W2, 2, False, PB, STB, loop)
x_final(PB, f"s{sXF2}")
stamp()
g(f"{noF2}:")
noR2 = g.lab("LnoR")
g(f"s_cmp_lt_u32 s{sI}, 14\ns_cbranch_scc1 {noR2}")
r_stage(XI, True, True)
g(f"{noR2}:")
stamp()
g(f"s_cmp_lg_u32 s{sPass}, 0\ns_cbranch_scc1 LFIN")
nst_loop = nstamp[0]
flush_stamps(0)
g(f"""s_mov_b32 s{sPass}, 1
s_add_u32 s{sXO}, s{sXO}, {2*XI}
s_add_u32 s{sXF2}, s{sXF2}, {2*XI}
s_add_u32 s{sXRd}, s{sXRd}, {2*XI}""")
set_pass_offsets()
loop = g.lab("Lq2")
g(f"s_add_u32 s{t3}, s{sGB}, {XB2}")
g(f"{loop}:")
x_loads(sWS, f"s{t3}", " sc1")
g("s_waitcnt vmcnt(0)")
m4_mms(WQ, 1, True, PA, STA, loop)
nq = g.lab("Lnq")
g(f"s_add_u32 s{t3}, s{sGB}, {QB1}")
g(f"s_cmp_lg_u32 s{sW}, 0\ns_cbranch_scc1 {nq}")
m4_final_ln(PA, STA, vCSQ)
g(f"v_mul_f32 v{T}, v{T}, v{T+5}")
pack_pairs(T, T)
g(f"s_mov_b32 exec_lo, {EVEN}\ns_mov_b32 exec_hi, {EVEN}")
lstore("buffer_store_dword", f"v{T}", vQS, f"s{t3}")
g(f"s_mov_b64 exec, -1\n{nq}:")
stamp()
loop = g.lab("La2")
g(f"{loop}:")
q_loads(f"s{t3}")
g("s_waitcnt vmcnt(0)")
qk(loop)
stamp()
g(f"""v_mul_f32 v{T+2}, s{sC}, v{T}
v_mul_f32 v{T+3}, -1.0, v{T+2}
s_mov_b64 exec, 3
ds_write_b32 v{vMW}, v{T+2}
s_mov_b64 exec, -1""")
rest = softmax_p(T + 3)
pm = [pv(u, tau) for tau in range(8) for u in range(4)]
weave(pm[:4], rest, [4, 4, 4, 0])
g("s_waitcnt lgkmcnt(0)\ns_barrier")
g(f"ds_read_b128 {vr(T+4,4)}, v{vMR}")
lsum = [f"v_add_f32 v{S}, v{S}, v{S+1}", f"v_add_f32 v{S+2}, v{S+2}, v{S+3}", f"v_add_f32 v{S}, v{S}, v{S+2}"] + red_steps("v_add_f32", S, S + 1)
weave(pm[4:8], lsum[:6], [2, 2, 1, 1])
scl = ["s_waitcnt lgkmcnt(0)", f"v_max3_f32 v{T}, v{T+4}, v{T+5}, v{T+6}", f"v_max_f32 v{T+2}, v{T}, v{T+7}",
       f"v_add_f32 v{T+8}, v{T+3}, v{T+2}", f"v_exp_f32 v{T+8}, -v{T+8}"]
weave(pm[8:12], scl + lsum[6:9], [2, 2, 2, 2])
weave(pm[12:16], lsum[9:] + [f"v_mul_f32 v{S}, v{S}, v{T+8}", "s_mov_b64 exec, 3", f"ds_write_b32 v{vMW}, v{S} offset:32", "s_mov_b64 exec, -1"], [2, 2, 2, 2])
def sw(tau): return [f"v_pk_mul_f32 {vr(D+4*tau,2)}, {vr(D+4*tau,2)}, {vr(T+8,2)} op_sel_hi:[1,0]",
                     f"v_pk_mul_f32 {vr(D+4*tau+2,2)}, {vr(D+4*tau+2,2)}, {vr(T+8,2)} op_sel_hi:[1,0]"] + exec_m2() + \
                    [f"ds_write_b128 v{vAOW}, {vr(D+4*tau,4)} offset:{64*tau}", "s_mov_b64 exec, -1"]
weave(pm[16:20], sw(0) + sw(1), [3, 3, 3, 3])
weave(pm[20:24], sw(2) + sw(3), [3, 3, 3, 3])
weave(pm[24:28], sw(4), [0, 2, 2, 2])
weave(pm[28:32], sw(5) + sw(6), [2, 2, 2, 6])
for x in sw(7): g(x)
g("s_waitcnt lgkmcnt(0)\ns_barrier")
attn_final()
stamp()
flush_stamps(16)
nstamp[0] = 0
g("s_branch LTOP")
g("LFIN:")
if DEBUG:
    nstamp[0] = nst_loop
    flush_stamps(32)
    g(f"""s_lshl_b32 s{t0}, s2, 2
    s_add_u32 s{t0}, s{t0}, s{sW}
    s_lshl_b32 s{t0}, s{t0}, 8
    s_add_u32 s{t0}, s{t0}, {STAMPS}
    buffer_store_dword v{vSTAMP}, v{vL4}, {sd(sWS)}, s{t0} offen""")
g("LEND:")

lines, nn = hz.run(g.L)
ref = open(f"cdna_kernels/{NAME}.s.ref").read().split("\n")
head = []
for l in ref:
    if l.startswith("; @launch"):
        head.append(f"; @launch grid=(256,1,1) block=(256,1,1) lds={LDS_TOTAL}")
    else:
        head.append(l)
    if l.startswith(f"{NAME}_kernel:"): break
desc = f"""s_endpgm
.section .rodata,"a"
.p2align 6
.amdhsa_kernel {NAME}_kernel
  .amdhsa_next_free_vgpr 512
  .amdhsa_next_free_sgpr 102
  .amdhsa_accum_offset 256
  .amdhsa_group_segment_fixed_size 0
  .amdhsa_kernarg_size 104
  .amdhsa_user_sgpr_count 2
  .amdhsa_user_sgpr_kernarg_segment_ptr 1
  .amdhsa_system_sgpr_workgroup_id_x 1
.end_amdhsa_kernel
"""
open(sys.argv[1], "w").write("\n".join(head) + "\n" + "\n".join(lines) + "\n" + desc)
print(f"vgprs {NV}, lines {len(lines)}, nops {nn}, lds {LDS_TOTAL}")
```

```python
import re, os
MF0 = int(os.environ.get('MF0', '0'))

TRANS = ("v_exp_f32", "v_log_f32", "v_rcp_f32", "v_rsq_f32", "v_sqrt_f32", "v_sin_f32", "v_cos_f32")
DPPK = ("quad_perm", "row_shl", "row_shr", "row_ror", "row_mirror", "row_half_mirror", "row_bcast", "wave_")

def regs_of(op):
    op = op.strip()
    op = op.lstrip("-").strip("|")
    m = re.fullmatch(r"([vas])(\d+)", op)
    if m:
        return [(m.group(1), int(m.group(2)))]
    m = re.fullmatch(r"([vas])\[(\d+):(\d+)\]", op)
    if m:
        return [(m.group(1), k) for k in range(int(m.group(2)), int(m.group(3)) + 1)]
    if op == "vcc":
        return [("s", 106), ("s", 107)]
    if op == "vcc_lo":
        return [("s", 106)]
    if op == "vcc_hi":
        return [("s", 107)]
    if op == "exec":
        return [("s", 126), ("s", 127)]
    if op == "m0":
        return [("s", 124)]
    return []

def split_ops(rest):
    out, depth, cur = [], 0, ""
    for ch in rest:
        if ch in "[(":
            depth += 1
        if ch in "])":
            depth -= 1
        if ch == "," and depth == 0:
            out.append(cur); cur = ""
        else:
            cur += ch
    if cur.strip():
        out.append(cur)
    return [o.strip() for o in out]

class Ins:
    pass

def parse(line):
    s = line.split(";")[0].strip()
    if not s or s.endswith(":") or s.startswith("."):
        return None
    parts = s.split(None, 1)
    mn = parts[0]
    rest = parts[1] if len(parts) > 1 else ""
    ops = split_ops(rest)
    mods = ""
    if ops:
        t = ops[-1].split(None, 1)
        if len(t) > 1 and not t[0].startswith("hwreg"):
            ops[-1] = t[0]; mods = t[1]
    I = Ins()
    I.mn, I.ops, I.mods = mn, ops, mods
    I.w, I.r = [], []
    I.cls = "other"
    I.srcC = []
    I.AB = []
    base = re.sub(r"_(e32|e64|dpp|sdwa)$", "", mn)
    I.base = base
    R = [regs_of(o) for o in ops]
    if base.startswith("v_mfma") or base.startswith("v_smfmac"):
        I.cls = "mfma"
        I.w = R[0]; I.AB = R[1] + R[2]
        if base.startswith("v_smfmac"):
            I.srcC = R[0]; I.AB += R[3]
        else:
            I.srcC = R[3]
        I.r = I.AB + I.srcC
    elif base.startswith("v_"):
        I.cls = "valu"
        if base.startswith("v_cmp"):
            I.w = R[0]; I.r = sum(R[1:], [])
        elif base.startswith("v_permlane") and "swap" in base:
            I.w = R[0] + R[1]; I.r = R[0] + R[1]
        elif base in ("v_add_co_u32", "v_sub_co_u32", "v_addc_co_u32", "v_subb_co_u32"):
            I.w = R[0] + R[1]; I.r = sum(R[2:], [])
        elif base == "v_nop":
            pass
        else:
            I.w = R[0]; I.r = sum(R[1:], [])
            if base in ("v_fmac_f32", "v_mac_f32", "v_pk_fmac_f16", "v_dot2c_f32_bf16", "v_writelane_b32"):
                I.r += R[0]
            if base == "v_cndmask_b32" and len(ops) == 3:
                I.r += regs_of("vcc")
        I.dpp = any(k in mods for k in DPPK)
        if I.dpp:
            I.r += R[0]
        I.trans = base in TRANS
    elif base.startswith("buffer_") or base.startswith("global_"):
        I.cls = "vmem"
        I.lds = bool(re.search(r"\blds\b", mods))
        if "load" in base and not I.lds:
            I.w = R[0]; I.r = sum(R[1:], [])
        else:
            I.r = sum(R, [])
        if I.lds:
            I.r += regs_of("m0")
        I.wide = ("store" in base) and (base.endswith("x3") or base.endswith("x4"))
        if I.wide:
            I.data = R[0] if base.startswith("buffer_") else R[1]
    elif base.startswith("ds_"):
        I.cls = "ds"
        if "read" in base or "permute" in base or "swizzle" in base:
            I.w = R[0]; I.r = sum(R[1:], [])
        else:
            I.r = sum(R, [])
    elif base.startswith("s_"):
        I.cls = "salu"
        if base in ("s_nop", "s_waitcnt", "s_barrier", "s_endpgm", "s_sleep", "s_branch", "s_setprio") or base.startswith("s_cbranch"):
            pass
        elif base.startswith("s_cmp") or base.startswith("s_bitcmp"):
            I.r = sum(R, [])
        else:
            I.w = R[0] if R else []
            I.r = sum(R[1:], [])
            if "saveexec" in base:
                I.w = I.w + regs_of("exec")
    return I

def run(lines):
    out = []
    pos = 0
    last_valu_w = {}
    last_trans_w = {}
    last_mfma_w = {}
    last_mfma_c = {}
    last_wide = {}
    last_salu_m0 = -100
    nnop = 0
    snaps = {}
    dead = False
    for line in lines:
        I = parse(line)
        if I is None:
            t = line.split(";")[0].strip()
            if t.endswith(":") and t[:-1] in snaps:
                for (p, sv, st, sm, sc, sw, m0) in snaps.pop(t[:-1]):
                    d = pos - p
                    for cur, old in ((last_valu_w, sv), (last_trans_w, st), (last_mfma_c, sc), (last_wide, sw)):
                        for r, q in old.items():
                            if r not in cur or cur[r] < q + d: cur[r] = q + d
                    for r, (q, tu) in sm.items():
                        if r not in last_mfma_w or last_mfma_w[r][0] < q + d: last_mfma_w[r] = (q + d, tu)
                    last_salu_m0 = max(last_salu_m0, m0 + d)
            out.append(line); continue
        need = 0
        def req(p, n):
            nonlocal need
            need = max(need, n - (pos - p - 1))
        if I.cls == "mfma":
            for r in I.r:
                if r in last_valu_w: req(last_valu_w[r], 2)
            for r in I.AB:
                if r in last_mfma_w: req(last_mfma_w[r][0], 8)
            for r in I.srcC:
                if r in last_mfma_w:
                    if last_mfma_w[r][1] != tuple(I.srcC): req(last_mfma_w[r][0], 6)
        elif I.cls == "valu":
            for r in I.r + I.w:
                if r in last_mfma_w: req(last_mfma_w[r][0], 8)
            for r in I.w:
                if r in last_mfma_c: req(last_mfma_c[r], 3)
                if r in last_wide: req(last_wide[r], 2)
            for r in I.r:
                if r in last_valu_w:
                    if r[0] == "s":
                        req(last_valu_w[r], 4 if I.base in ("v_readlane_b32", "v_writelane_b32") else 2)
                    elif I.dpp or I.base.startswith("v_permlane"):
                        req(last_valu_w[r], 2)
                    elif I.base in ("v_readlane_b32", "v_readfirstlane_b32"):
                        req(last_valu_w[r], 1)
                if r in last_trans_w: req(last_trans_w[r], 1)
        elif I.cls in ("vmem", "ds"):
            for r in I.r + I.w:
                if r in last_mfma_w: req(last_mfma_w[r][0], 8)
            for r in I.r:
                if r[0] == "s" and r in last_valu_w: req(last_valu_w[r], 5)
                if r in last_trans_w: req(last_trans_w[r], 1)
            for r in I.w:
                if r in last_wide: req(last_wide[r], 1)
            if I.cls == "vmem" and I.lds: req(last_salu_m0, 1)
        elif I.cls == "salu":
            for r in I.r:
                if r in last_valu_w and r[0] == "s": req(last_valu_w[r], 1)
        while need > 0:
            k = min(need, 8)
            out.append(f"    s_nop {k-1}")
            pos += k; need -= k; nnop += 1
        out.append(line)
        if I.cls == "valu":
            for r in I.w:
                last_valu_w[r] = pos
                last_mfma_w.pop(r, None)
                if I.trans: last_trans_w[r] = pos
                else: last_trans_w.pop(r, None)
        elif I.cls == "mfma":
            for r in I.w:
                last_mfma_w[r] = (pos, tuple(I.w)); last_valu_w.pop(r, None); last_trans_w.pop(r, None)
            for r in I.srcC: last_mfma_c[r] = pos
        elif I.cls == "vmem":
            if I.wide:
                for r in I.data: last_wide[r] = pos
            for r in I.w:
                last_valu_w.pop(r, None); last_trans_w.pop(r, None)
        elif I.cls == "ds":
            for r in I.w:
                last_valu_w.pop(r, None); last_trans_w.pop(r, None)
        elif I.cls == "salu":
            for r in I.w:
                last_valu_w.pop(r, None)
                if r == ("s", 124): last_salu_m0 = pos
        if I.base == "s_nop":
            pos += int(I.ops[0]) + 1
        elif I.cls == "mfma" and MF0:
            pass
        else:
            pos += 1
        if I.base == "s_branch" or I.base.startswith("s_cbranch"):
            snaps.setdefault(I.ops[0], []).append((pos, dict(last_valu_w), dict(last_trans_w), dict(last_mfma_w), dict(last_mfma_c), dict(last_wide), last_salu_m0))
    return out, nnop
```

```python
import sys, math, struct
import hz

NAME = "interleave_layers__sliding_block_cached__dense_activation_gelu__decode"
OPT = dict(DEBUG=0, D=6, FORCE_SLOW=0, NT=3, Q1S=2, WOS=12, W1S=14, WQP=2, NOWQ=0, SS=0, WNT=0, NOTAB=0, TABM=0, WQS=0, WQROT=0, WQNT=1)
for a_ in sys.argv[2:]:
    k_, v_ = a_.split("="); OPT[k_] = int(v_)
DEBUG = OPT["DEBUG"]; DEPTH = OPT["D"]
WNTS = " nt" if OPT["WNT"] else ""

def f32(x): return struct.unpack("<I", struct.pack("<f", x))[0]

class G:
    def __init__(s):
        s.L = []; s.vm = []; s.nl = 0; s.tail = []
    def __call__(s, t):
        for l in t.strip("\n").split("\n"):
            l = l.strip()
            if l: s.L.append(("    " + l) if not l.endswith(":") else l)
    def lab(s, p="L"):
        s.nl += 1; return f"{p}{s.nl}"
    def vmem(s, t, tag=None):
        s(t); s.vm.append(tag)
    def wait_vm(s, tag):
        idx = max(i for i, x in enumerate(s.vm) if x == tag)
        n = len(s.vm) - 1 - idx
        s(f"s_waitcnt vmcnt({min(n,63)})")
g = G()

_v = [1]
def V(n=1, al=1):
    while _v[0] % al: _v[0] += 1
    r = _v[0]; _v[0] += n; return r
def vr(b, n): return f"v[{b}:{b+n-1}]" if n > 1 else f"v{b}"
def ar(b, n): return f"a[{b}:{b+n-1}]"

vL = V(); vL4 = V(); vL8 = V(); vL16 = V()
vXF = V(); vXF2 = V(); vQF = V(); vOF = V(); vSF = V()
vQS = V(); vHS = V(); vRS = V()
vPW = V(); vPW1 = V(); vPR = V(); vPR4 = V(); vSTW = V(); vSTR = V()
vAOW = V(); vAOR = V(); vMW = V(); vMR = V(); vSS = V()
vWD1 = V(); vWD9 = V(); vT64a = V()
vB1 = V(); vCSQ = V(); vCS1 = V(); vSTAMP = V()
vB2 = V(2, 2); vRES = V(2, 2)
WQ = V(20, 2); WO = V(32, 2); W1 = V(40, 2); W2 = V(40, 2)
vKD = W2; vKR = W2 + 4; vVR = W2 + 8; vWQD = W2 + 16; vT32a = W2 + 17
XF = V(20, 2); QO = V(16, 2); D = V(32, 2); S = V(4, 2); T = V(14, 2)
NV = _v[0]
assert NV <= 256, NV
P = QO
ST = D + 16

sK, sV, sWQ, sWO, sW1, sW2, sWS, sWSF, sWSS, sOUT, sX0, sDBG = [32 + 4 * i for i in range(12)]
def sd(b): return f"s[{b}:{b+3}]"
sW, sG, sI, sBud, sU, sPass, sC, sGB = range(80, 88)
sOB, sSB, sXO, sXRd, sXB, sHB = range(88, 94)
sM4 = "s[94:95]"; sMT = "s[96:97]"; sMT0 = 96
t0, t1, t2, t3 = 98, 99, 100, 101
sRc, sCF2, sXF2, sFlag, sAO, sAS, sInv, sEps = range(24, 32)
s3 = 3
sRB, sOOR = 22, 23

GSTR = 65536
XB1, XB2, XB3 = 0, 5120, 10240
QB1 = 15360; OB0 = 19456; SB0 = 52224; HB0 = 53248
XR = 524288; XI = 73728
QB0 = 1 << 20
WSREC = (1 << 20) + 32768
STAMPS = 2 << 20
WREG = 37888
PA = 4 * WREG
PB = PA + 2048
PC = PA + 4096
STA = PA + 6144
STB = STA + 128
DUMP = STA + 256
AO = STA + 512
ME = AO + 4096
LDS_TOTAL = ME + 128
assert LDS_TOTAL <= 163840
LWO, LW1, LW2 = 0, 8192, 8192 + 10240

nstamp = [0]
def stamp():
    if DEBUG:
        k = nstamp[0]; nstamp[0] += 1
        assert k < 9
        g(f"s_memrealtime s[{4+2*k}:{5+2*k}]")
def flush_stamps(lane0):
    if DEBUG:
        g("s_waitcnt lgkmcnt(0)")
        for k in range(nstamp[0]):
            if not (OPT["SS"] and lane0): g(f"v_writelane_b32 v{vSTAMP}, s{4+2*k}, {lane0+k}")
            g(f"s_mov_b32 s{4+2*k}, 0")
        nstamp[0] = 0

def srd(dst, lo, hi, off, rec):
    if off == 0:
        g(f"s_mov_b32 s{dst}, s{lo}\ns_mov_b32 s{dst+1}, s{hi}")
    else:
        g(f"s_add_u32 s{dst}, s{lo}, {off}\ns_addc_u32 s{dst+1}, s{hi}, 0")
    g(f"s_mov_b32 s{dst+2}, {rec}\ns_mov_b32 s{dst+3}, 0x20000")

def mfma32(d, a, b, c): return f"v_mfma_f32_16x16x32_bf16 {vr(d,4)}, {a}, {b}, {c}"
def mfma16(d, a, b, c): return f"v_mfma_f32_16x16x16_bf16 {vr(d,4)}, {a}, {b}, {c}"

def weave(main, side, gaps):
    side = list(side)
    for i, m in enumerate(main):
        g(m)
        n = gaps[i] if i < len(gaps) else 0
        for _ in range(n):
            if side: g(side.pop(0))
    for x in side: g(x)

def chk_ops(regs, tmp):
    ops = []
    h = (len(regs) + 1) // 2
    A, B = regs[:h], regs[h:]
    def chain(rs, t):
        o = []
        if len(rs) >= 3:
            o.append(f"v_max3_u32 v{t}, v{rs[0]}, v{rs[1]}, v{rs[2]}"); k = 3
        else:
            o.append(f"v_max_u32 v{t}, v{rs[0]}, v{rs[1]}"); k = 2
        while k < len(rs):
            if k + 1 < len(rs):
                o.append(f"v_max3_u32 v{t}, v{t}, v{rs[k]}, v{rs[k+1]}"); k += 2
            else:
                o.append(f"v_max_u32 v{t}, v{t}, v{rs[k]}"); k += 1
        return o
    ca, cb = chain(A, tmp), chain(B, tmp + 1)
    for i in range(max(len(ca), len(cb))):
        if i < len(ca): ops.append(ca[i])
        if i < len(cb): ops.append(cb[i])
    ops.append(f"v_max_u32 v{tmp}, v{tmp}, v{tmp+1}")
    ops.append(f"v_cmp_eq_u32 vcc, -1, v{tmp}")
    return ops

FINE = [0]
def retry(loop):
    ok = g.lab("Lok")
    g(f"""s_cbranch_vccz {ok}
    s_sub_u32 s{sBud}, s{sBud}, 1
    s_cbranch_scc0 {loop}
    s_mov_b32 s{sBud}, 0
    {ok}:""")
    if FINE[0]: stamp()

def lstore(op, data, vaddr, soff, imm=0):
    o = f" offset:{imm}" if imm else ""
    g(f"{op} {data}, v{vaddr}, {sd(sWSF)}, {soff} offen{o}")
    g(f"{op} {data}, v{vaddr}, {sd(sWSS)}, {soff} offen{o} sc1")

def xfrag(ks): return vr(XF + 4 * ks, 4)
def wfrag(W, t, ks): return vr(W + 20 * t + 4 * ks, 4)
def mm(d, a, b, ks):
    c = "0" if ks == 0 else vr(d, 4)
    return mfma32(d, a, b, c)

def x_loads(srdb, soff, flags, tag=None):
    g(f"s_mov_b64 exec, {sM4}")
    for ks in range(4):
        g.vmem(f"buffer_load_dwordx4 {xfrag(ks)}, v{vXF}, {sd(srdb)}, {soff} offen offset:{64*ks}{flags}", tag)
    g.vmem(f"buffer_load_dwordx4 {xfrag(4)}, v{vXF2}, {sd(srdb)}, {soff} offen{flags}", tag)
    g("s_mov_b64 exec, -1")

def gram_merge(stb):
    G_ = D
    return [f"s_mov_b64 {sMT}, 2", f"v_cndmask_b32 v{G_}, v{G_}, v{G_+1}, {sMT}",
            f"s_mov_b64 {sMT}, 4", f"v_cndmask_b32 v{G_}, v{G_}, v{G_+2}, {sMT}",
            f"s_mov_b64 {sMT}, 8", f"v_cndmask_b32 v{G_}, v{G_}, v{G_+3}, {sMT}",
            f"ds_write_b32 v{vSTW}, v{G_} offset:{stb-STA}"]

def m4_mms(W, nt, ln, pa, stb, loop=None, colsum=None):
    Gm = [mm(D, xfrag(ks), xfrag(ks), ks) for ks in range(5)] if ln else []
    Tm = [[mm(D + 4 + 4 * t, wfrag(W, t, ks), xfrag(ks), ks) for ks in range(5)] for t in range(nt)]
    first = Gm if ln else Tm[0]
    if loop:
        weave(first[:3], chk_ops(list(range(XF, XF + 20)), T), [4, 4, 4])
        retry(loop)
        for m in first[3:]: g(m)
    else:
        for m in first: g(m)
    def pw(t): return [f"s_mov_b64 exec, {sM4}", f"ds_write_b128 v{vPW}, {vr(D+4+4*t,4)} offset:{pa-PA+256*t}", "s_mov_b64 exec, -1"]
    pend = gram_merge(stb) if ln else pw(0)
    rest = Tm if ln else Tm[1:]
    k0 = 0 if ln else 1
    for j, tm in enumerate(rest):
        weave(tm, pend, [0, 0, 0, 3, 4])
        pend = pw(k0 + j)
    if colsum is not None:
        for t in range(nt):
            cm = []
            for ks in range(5):
                b = vr(T + 4, 4)
                cm.append(mm(D + 12 + 4 * t, wfrag(W, t, ks), b, ks))
            weave(cm, pend, [0, 0, 0, 3, 4])
            pend = [f"s_mov_b64 exec, {sM4}", f"ds_write_b128 v{vPW}, {vr(D+12+4*t,4)} offset:{colsum-PA+256*t}", "s_mov_b64 exec, -1"]
    for x in pend: g(x)
    g("s_waitcnt lgkmcnt(0)\ns_barrier")

def m4_final_ln(pa, stb, cs, colsum=None):
    o = (pa - PA) // 256
    g(f"ds_read_b128 {vr(T+4,4)}, v{vSTR} offset:{stb-STA}")
    g(f"ds_read_b128 {vr(T+8,4)}, v{vSTR} offset:{stb-STA+16}")
    g(f"ds_read2st64_b32 {vr(T,2)}, v{vPR} offset0:{o} offset1:{o+2}")
    g(f"ds_read2st64_b32 {vr(T+2,2)}, v{vPR} offset0:{o+4} offset1:{o+6}")
    if colsum is not None:
        oc = (colsum - PA) // 256
        g(f"ds_read2st64_b32 {vr(D,2)}, v{vPR} offset0:{oc} offset1:{oc+2}")
        g(f"ds_read2st64_b32 {vr(D+2,2)}, v{vPR} offset0:{oc+4} offset1:{oc+6}")
        g(f"s_waitcnt lgkmcnt(0)")
        g(f"v_add_f32 v{D}, v{D}, v{D+1}\nv_add_f32 v{D+2}, v{D+2}, v{D+3}\nv_add_f32 v{cs}, v{D}, v{D+2}")
    g(f"""s_waitcnt lgkmcnt(2)
    v_pk_add_f32 {vr(T+4,2)}, {vr(T+4,2)}, {vr(T+6,2)}
    v_pk_add_f32 {vr(T+8,2)}, {vr(T+8,2)}, {vr(T+10,2)}
    v_pk_add_f32 {vr(T+4,2)}, {vr(T+4,2)}, {vr(T+8,2)}
    v_mul_f32 v{T+4}, s{sInv}, v{T+4}
    v_mov_b32 v{T+6}, s{sEps}
    v_fma_f32 v{T+5}, v{T+5}, s{sInv}, v{T+6}
    v_fma_f32 v{T+5}, -v{T+4}, v{T+4}, v{T+5}
    v_rsq_f32 v{T+5}, v{T+5}
    s_waitcnt lgkmcnt(0)
    v_pk_add_f32 {vr(T,2)}, {vr(T,2)}, {vr(T+2,2)}
    v_add_f32 v{T}, v{T}, v{T+1}
    v_fma_f32 v{T}, -v{T+4}, v{cs}, v{T}""")

def pack_pairs(src, dst):
    g(f"v_mov_b32_dpp v{src+1}, v{src} quad_perm:[1,0,3,2] row_mask:0xf bank_mask:0xf")
    g(f"v_cvt_pk_bf16_f32 v{dst}, v{src}, v{src+1}")

def x_final(pa, soff):
    skip = g.lab("Lxf")
    g(f"s_cmp_lg_u32 s{sW}, 0\ns_cbranch_scc1 {skip}")
    q = [T, T + 4, T + 8, D]
    for w in range(4):
        g(f"ds_read_b128 {vr(q[w],4)}, v{vPR4} offset:{pa-PA+512*w}")
    g("s_waitcnt lgkmcnt(2)")
    g(f"v_pk_add_f32 {vr(T,2)}, {vr(T,2)}, {vr(T+4,2)}\nv_pk_add_f32 {vr(T+2,2)}, {vr(T+2,2)}, {vr(T+6,2)}")
    g("s_waitcnt lgkmcnt(0)")
    g(f"v_pk_add_f32 {vr(T+8,2)}, {vr(T+8,2)}, {vr(D,2)}\nv_pk_add_f32 {vr(T+10,2)}, {vr(T+10,2)}, {vr(D+2,2)}")
    g(f"s_mov_b32 exec_hi, 0")
    g(f"v_pk_add_f32 {vr(T,2)}, {vr(T,2)}, {vr(T+8,2)}\nv_pk_add_f32 {vr(T+2,2)}, {vr(T+2,2)}, {vr(T+10,2)}")
    g(f"buffer_store_dwordx4 {vr(T,4)}, v{vL16}, {sd(sWS)}, {soff} offen sc1")
    g("s_mov_b64 exec, -1")
    g(f"{skip}:")

def prep64(W, loc, nks, nt=2):
    n = 0
    for t in range(nt):
        for ks in range(nks):
            for h in range(2):
                base = W + 4 * nks * t + 4 * ks + 2 * h
                g(f"ds_read_b64_tr_b16 {vr(base,2)}, v{vT64a} offset:{loc+2048*ks+256*h+32*t}")
                n += 1
                if n % 12 == 0: g("s_waitcnt lgkmcnt(4)")
    g("s_waitcnt lgkmcnt(0)")

def wdma(srdb, vaddr, stride, rows_per_wave, loc, n0, n1, tag):
    if rows_per_wave == 128: g(f"s_mul_i32 s{t0}, s{sW}, {rows_per_wave*stride}")
    else: g(f"s_mul_i32 s{t0}, s{sRB}, {stride}")
    g(f"s_mul_i32 s{t1}, s{sW}, {WREG}")
    for n in range(n0, n1):
        g(f"s_add_u32 m0, s{t1}, {loc+1024*n}")
        if n == 8: g(f"s_add_u32 s{t0}, s{t0}, s{sOOR}")
        g(f"s_add_u32 s{t2}, s{t0}, {16*stride*n}")
        g.vmem(f"buffer_load_dwordx4 v{vaddr}, {sd(srdb)}, s{t2} offen{WNTS} lds", tag)

def red_steps(op, r, tmp):
    return [f"{op}_dpp v{r}, v{r}, v{r} quad_perm:[2,3,0,1] row_mask:0xf bank_mask:0xf",
            f"{op}_dpp v{r}, v{r}, v{r} row_ror:4 row_mask:0xf bank_mask:0xf",
            f"{op}_dpp v{r}, v{r}, v{r} row_ror:8 row_mask:0xf bank_mask:0xf",
            f"v_mov_b32 v{tmp}, v{r}", f"v_permlane16_swap_b32 v{r}, v{tmp}", f"{op} v{r}, v{r}, v{tmp}",
            f"v_mov_b32 v{tmp}, v{r}", f"v_permlane32_swap_b32 v{r}, v{tmp}", f"{op} v{r}, v{r}, v{tmp}"]

def q_loads(soff, tag=None):
    for ks in range(4):
        g.vmem(f"buffer_load_dwordx4 {vr(QO+4*ks,4)}, v{vQF}, {sd(sWS)}, {soff} offen offset:{64*ks} sc1", tag)

def qk(loop):
    acc = [S, D, D + 4]
    def tile(t):
        a = S if t == 0 else D + 4 * (t & 1)
        return [mfma32(a, ar(16 * t + 4 * ks, 4), vr(QO + 4 * ks, 4), "0" if ks == 0 else vr(a, 4)) for ks in range(4)]
    def merge(t):
        a = D + 4 * (t & 1)
        m = 0x0003000300030003 << (2 * t)
        return [f"s_mov_b32 s{sMT0}, {m & 0xffffffff:#x}", f"s_mov_b32 s{sMT0+1}, {m >> 32:#x}"] + \
               [f"v_cndmask_b32 v{S+r}, v{S+r}, v{a+r}, {sMT}" for r in range(4)]
    if loop:
        weave(tile(0)[:3], chk_ops(list(range(QO, QO + 16)), T), [4, 4, 4])
        retry(loop)
        g(tile(0)[3])
    else:
        for m in tile(0): g(m)
    for t in range(1, 8):
        weave(tile(t), merge(t - 1) if t > 1 else [], [2, 0, 0, 4])
    for x in merge(7): g(x)
    g(f"v_max3_f32 v{T}, v{S}, v{S+1}, v{S+2}\nv_max_f32 v{T}, v{T}, v{S+3}")
    for x in red_steps("v_max_f32", T, T + 1): g(x)

def softmax_p(mreg):
    for r in range(4): g(f"v_fma_f32 v{S+r}, v{S+r}, s{sC}, v{mreg}")
    for r in range(4): g(f"v_exp_f32 v{S+r}, v{S+r}")
    g(f"v_cvt_pk_bf16_f32 v{P}, v{S}, v{S+1}\nv_cvt_pk_bf16_f32 v{P+1}, v{S+2}, v{S+3}")
    def sh(dst, src, n): return f"v_mov_b32_dpp v{dst}, v{src} row_shl:{n} row_mask:0xf bank_mask:0xf bound_ctrl:0"
    g(sh(P + 2, P, 2)); g(sh(P + 3, P + 1, 2))
    rest = []
    for u in range(1, 4):
        rest += [sh(P + 4 * u, P, 4 * u), sh(P + 4 * u + 1, P + 1, 4 * u), sh(P + 4 * u + 2, P, 4 * u + 2), sh(P + 4 * u + 3, P + 1, 4 * u + 2)]
    return rest

def pv(u, tau): return mfma32(D + 4 * tau, ar(128 + 32 * u + 4 * tau, 4), vr(P + 4 * u, 4), "0" if u == 0 else vr(D + 4 * tau, 4))
M2 = "0x00030003"
def exec_m2(): return [f"s_mov_b32 exec_lo, {M2}", f"s_mov_b32 exec_hi, {M2}"]

def attn_final():
    a = g.lab("Laf"); b = g.lab("Laf")
    g(f"s_cmp_gt_u32 s{sW}, 1\ns_cbranch_scc1 {a}")
    for w in range(4):
        g(f"ds_read_b64 {vr(T+4+2*w,2)}, v{vAOR} offset:{1024*w}")
    g(f"""s_waitcnt lgkmcnt(2)
    v_pk_add_f32 {vr(T+4,2)}, {vr(T+4,2)}, {vr(T+6,2)}
    s_waitcnt lgkmcnt(0)
    v_pk_add_f32 {vr(T+8,2)}, {vr(T+8,2)}, {vr(T+10,2)}
    v_pk_add_f32 {vr(T+4,2)}, {vr(T+4,2)}, {vr(T+8,2)}
    v_cvt_pk_bf16_f32 v{T+4}, v{T+4}, v{T+5}""")
    lstore("buffer_store_dword", f"v{T+4}", vL4, f"s{sAO}")
    g(f"s_branch {b}\n{a}:")
    g(f"s_cmp_lg_u32 s{sW}, 2\ns_cbranch_scc1 {b}")
    g(f"""ds_read_b128 {vr(T+4,4)}, v{vMR} offset:32
    s_mov_b64 exec, 3""")
    lstore("buffer_store_dword", f"v{T+2}", vSS, f"s{sAS}")
    g(f"""s_waitcnt lgkmcnt(0)
    v_pk_add_f32 {vr(T+4,2)}, {vr(T+4,2)}, {vr(T+6,2)}
    v_add_f32 v{T+4}, v{T+4}, v{T+5}""")
    lstore("buffer_store_dword", f"v{T+4}", vSS, f"s{sAS}", 16)
    g(f"s_mov_b64 exec, -1\n{b}:")

def set_pass_offsets():
    g(f"""s_lshl_b32 s{t0}, s{sPass}, 14
    s_add_u32 s{sOB}, s{sGB}, s{t0}
    s_add_u32 s{sOB}, s{sOB}, {OB0}
    s_lshl_b32 s{t0}, s{sPass}, 9
    s_add_u32 s{sSB}, s{sGB}, s{t0}
    s_add_u32 s{sSB}, s{sSB}, {SB0}
    s_mul_i32 s{t0}, s{sPass}, {XB3-XB1}
    s_add_u32 s{sXB}, s{sGB}, s{t0}
    s_mul_i32 s{t0}, s{sPass}, 5120
    s_add_u32 s{sHB}, s{sGB}, s{t0}
    s_add_u32 s{sHB}, s{sHB}, {HB0}
    s_and_b32 s{t0}, s{sI}, 1
    s_lshl_b32 s{t0}, s{t0}, 1
    s_add_u32 s{t1}, s{t0}, s{sW}
    s_lshl_b32 s{t1}, s{t1}, 12
    s_bfe_u32 s{t2}, s{sI}, 0x20001
    s_lshr_b32 s{t3}, s{sI}, 3
    s_lshl_b32 s{sAO}, s{t2}, 2
    s_add_u32 s{sAO}, s{sAO}, s{t3}
    s_lshl_b32 s{sAO}, s{sAO}, 8
    s_add_u32 s{sAO}, s{sAO}, s{t1}
    s_add_u32 s{sAO}, s{sAO}, s{sOB}
    s_lshl_b32 s{t0}, s{t0}, 2
    s_add_u32 s{t0}, s{t0}, s{t2}
    s_lshl_b32 s{t0}, s{t0}, 5
    s_lshl_b32 s{t3}, s{t3}, 2
    s_add_u32 s{t0}, s{t0}, s{t3}
    s_add_u32 s{sAS}, s{t0}, s{sSB}""")

def r_stage(inst_extra, with_b2, final_ok):
    skip = g.lab("Lrs"); loop = g.lab("Lrl")
    g(f"s_cmp_lg_u32 s{sW}, 3\ns_cbranch_scc1 {skip}")
    if final_ok:
        go = g.lab("Lrg")
        g(f"""s_cmp_eq_u32 s{sPass}, 0
        s_cbranch_scc1 {go}
        s_bfe_u32 s{t0}, s{sRc}, 0x30006
        s_cmp_lg_u32 s{t0}, s{sG}
        s_cbranch_scc1 {skip}
        {go}:""")
    g(f"s_add_u32 s{t0}, s{sXRd}, {inst_extra}")
    g(f"{loop}:")
    for k in range(8):
        g(f"buffer_load_dwordx2 {vr(QO+2*k,2)}, v{vL8}, {sd(sWS)}, s{t0} offen offset:{512*k} sc1")
    def pa(a, b): return f"v_pk_add_f32 {vr(QO+2*a,2)}, {vr(QO+2*a,2)}, {vr(QO+2*b,2)}"
    g("s_waitcnt vmcnt(4)")
    g(pa(0, 1)); g(pa(2, 3))
    g("s_waitcnt vmcnt(0)")
    g(pa(4, 5)); g(pa(6, 7)); g(pa(0, 2)); g(pa(4, 6)); g(pa(0, 4))
    g(f"v_cmp_u_f32 vcc, v{QO}, v{QO+1}")
    g(f"v_cvt_pk_bf16_f32 v{QO+2}, v{QO}, v{QO+1}")
    retry(loop)
    def unp(dst, src): g(f"v_lshlrev_b32 v{dst}, 16, v{src}\nv_and_b32 v{dst+1}, 0xffff0000, v{src}")
    unp(QO, QO + 2)
    if with_b2:
        g(f"v_pk_add_f32 {vr(QO,2)}, {vr(QO,2)}, {vr(vB2,2)}")
        g(f"v_cvt_pk_bf16_f32 v{QO+2}, v{QO}, v{QO+1}")
        unp(QO, QO + 2)
    g(f"v_pk_add_f32 {vr(QO,2)}, {vr(QO,2)}, {vr(vRES,2)}")
    g(f"v_cvt_pk_bf16_f32 v{QO+2}, v{QO}, v{QO+1}")
    if final_ok:
        fin = g.lab("Lrf")
        g(f"s_cmp_lg_u32 s{sPass}, 0\ns_cbranch_scc1 {fin}")
        g(f"s_add_u32 s{t0}, s{sGB}, s{sRc}")
        g(f"s_add_u32 s{t0}, s{t0}, {XB2}")
        lstore("buffer_store_dword", f"v{QO+2}", vRS, f"s{t0}")
        unp(vRES, QO + 2)
        g(f"s_branch {skip}\n{fin}:")
        g(f"buffer_store_dword v{QO+2}, v{vRS}, {sd(sOUT)}, s{sRc} offen")
    else:
        g(f"s_add_u32 s{t0}, s{sXB}, s{sRc}")
        lstore("buffer_store_dword", f"v{QO+2}", vRS, f"s{t0}")
        unp(vRES, QO + 2)
    g(f"{skip}:")

EVEN = "0x55555555"
if DEBUG: g(f"s_memrealtime s[30:31]\nv_mov_b32 v{vSTAMP}, 0")
g(f"""
s_cmp_ge_u32 s2, 256
s_cbranch_scc1 LEND
s_load_dwordx16 s[4:19], s[0:1], 0
s_load_dwordx8 s[20:27], s[0:1], 64
s_load_dwordx2 s[28:29], s[0:1], 96
v_and_b32 v{vL}, 63, v0
v_lshrrev_b32 v{T}, 6, v0
s_and_b32 s{sG}, s2, 7
v_readfirstlane_b32 s{sW}, v{T}
s_lshr_b32 s{sI}, s2, 3
s_mov_b32 s94, 0x000f000f
s_mov_b32 s95, 0x000f000f
v_and_b32 v{T+1}, 15, v{vL}
v_lshrrev_b32 v{T+2}, 4, v{vL}
v_lshlrev_b32 v{vL16}, 4, v{vL}
v_mov_b32 v{T+4}, -1
v_mov_b32 v{T+5}, -1
v_mov_b32 v{T+6}, -1
v_mov_b32 v{T+7}, -1
s_mul_i32 s{s3}, s{sW}, 160
s_cmp_eq_u32 s{sW}, 3
s_cselect_b32 s{s3}, 448, s{s3}
s_cmp_ge_u32 s{sW}, 2
s_cselect_b32 s{sPass}, 0x40000000, 0
s_lshl_b32 s{t0}, s{s3}, 1
v_mul_u32_u24 v{vXF}, 1152, v{T+1}
v_add_u32 v{vXF}, s{t0}, v{vXF}
v_lshl_add_u32 v{vXF}, v{T+2}, 4, v{vXF}
s_add_u32 s{t0}, s{sPass}, 256
v_add_u32 v{vXF2}, s{t0}, v{vXF}
v_lshrrev_b32 v{T+3}, 1, v{vL}
v_lshlrev_b32 v{vWQD}, 13, v{T+3}
v_and_b32 v{T+3}, 1, v{vL}
v_lshl_add_u32 v{vWQD}, v{T+3}, 4, v{vWQD}
v_cmp_eq_u32 vcc, 4, v{T+1}
v_mov_b32 v{T+8}, 0x3f803f80
v_mov_b32 v{T+9}, 0
v_cndmask_b32 v{XF}, v{T+9}, v{T+8}, vcc
""")
for k in range(1, 20): g(f"v_mov_b32 v{XF+k}, v{XF}")
for j in range(4):
    g(f"""v_add_u32 v{T+3}, {4*j}, v{T+2}
    v_xor_b32 v{T+3}, v{T+3}, v{T+1}
    v_lshlrev_b32 v{T+3}, 4, v{T+3}
    v_lshl_add_u32 v{vKD+j}, v{T+2}, 8, v{T+3}""")
g(f"""
v_lshlrev_b32 v{vQS}, 10, v{T+2}
v_lshl_add_u32 v{vQS}, v{T+1}, 1, v{vQS}
s_lshl_b32 s{t0}, s{sI}, 5
v_add_u32 v{vQS}, s{t0}, v{vQS}
s_and_b32 s{t0}, s{sI}, 1
s_lshl_b32 s{t1}, s{sG}, 1
s_add_u32 s{t1}, s{t1}, s{t0}
s_lshl_b32 s{t1}, s{t1}, 21
s_bfe_u32 s{t2}, s{sI}, 0x20001
s_lshl_b32 s{t2}, s{t2}, 25
s_add_u32 s{t1}, s{t1}, s{t2}
s_lshr_b32 s{t2}, s{sI}, 3
s_lshl_b32 s{t2}, s{t2}, 17
s_add_u32 s{t1}, s{t1}, s{t2}
s_add_u32 s{t3}, s{t1}, {6144*256}
s_mul_i32 s{sU}, s2, 17
s_add_u32 s{sU}, s{sU}, s{sW}
s_and_b32 s{sU}, s{sU}, 127
s_lshl_b32 s{sU}, s{sU}, 10
s_lshl_b32 s{t0}, s{sG}, 10
s_lshl_b32 s{t1}, s{sI}, 5
s_add_u32 s{t0}, s{t0}, s{t1}
s_sub_u32 s{t1}, {576*8192}, s{t0}
s_lshl_b32 s{sGB}, s{sG}, 16
s_waitcnt lgkmcnt(0)
""")
if DEBUG: g(f"v_writelane_b32 v{vSTAMP}, s30, 63\ns_memrealtime s[88:89]")
srd(sK, 6, 7, f"s{t3}", 131072)
srd(sWS, 28, 29, 0, (4 << 20) if DEBUG else WSREC)
srd(sWQ, 10, 11, f"s{t0}", 0 if OPT["NOWQ"] else f"s{t1}")
nc = g.lab("Lnc")
g(f"""s_cmp_lg_u32 s{sW}, 0
s_cbranch_scc1 {nc}
s_lshl_b32 s{t0}, s2, 12""")
for n in range(4):
    g(f"buffer_store_dwordx4 {vr(T+4,4)}, v{vL16}, {sd(sWS)}, s{t0} offen offset:{1024*n} sc1")
g(f"""s_lshl_b32 s{t0}, s{sG}, 12
s_add_u32 s{t0}, s{t0}, {QB0}
s_mov_b32 exec_lo, {EVEN}
s_mov_b32 exec_hi, {EVEN}
buffer_store_dword v{T+4}, v{vQS}, {sd(sWS)}, s{t0} offen sc1
s_mov_b64 exec, -1
{nc}:""")
g.vm.append("clr")

def issue_tile(n):
    srdb = sK if n < 8 else sV
    for j in range(4):
        g(f"s_mul_i32 s{t1}, s{sW}, {WREG}" if j == 0 else f"s_add_u32 m0, m0, 1024")
        if j == 0: g(f"s_add_u32 m0, s{t1}, {4096*(n%8)}")
        else: g(f"s_and_b32 s{sU}, s{sU}, 0x1ffff")
        g.vmem(f"buffer_load_dwordx4 v{vKD+j}, {sd(srdb)}, s{sU} offen nt lds", f"t{n}")
        g(f"s_add_u32 s{sU}, s{sU}, 4096")
    g(f"s_and_b32 s{sU}, s{sU}, 0x1ffff")

def issue_x():
    srd(sX0, 4, 5, 0, 4608)
    x_loads(sX0, "0", "", "x")
def issue_wq1(n):
    rb = s3 if not PRO_DONE[0] else sRB
    oo = sPass if not PRO_DONE[0] else sOOR
    g(f"s_lshl_b32 s{t0}, s{rb}, 13\ns_mul_i32 s{t1}, s{sW}, {WREG}")
    if n < 4 and OPT["WQROT"]:
        g(f"""s_add_u32 s{t2}, s{sI}, {n}
        s_and_b32 s{t2}, s{t2}, 3
        s_lshl_b32 m0, s{t2}, 10
        s_add_u32 m0, m0, s{t1}
        s_add_u32 m0, m0, 32768
        s_lshl_b32 s{t2}, s{t2}, 18
        s_add_u32 s{t2}, s{t2}, s{t0}""")
    else:
        g(f"s_add_u32 m0, s{t1}, {32768+1024*n}")
        if n == 4: g(f"s_add_u32 s{t0}, s{t0}, s{oo}")
        g(f"s_add_u32 s{t2}, s{t0}, {32*8192*n}")
    g.vmem(f"buffer_load_dwordx4 v{vWQD}, {sd(sWQ)}, s{t2} offen{' nt' if OPT['WQNT'] else ''} lds", "wq")
PRO_DONE = [0]
WQP = OPT["WQP"]
wq_left = list(range(5))
def after_tile(n):
    if OPT["WQS"]:
        if n == 0: issue_x()
        if n >= WQP - 1 and wq_left: issue_wq1(wq_left.pop(0))
    elif n == WQP - 1:
        issue_x()
        while wq_left: issue_wq1(wq_left.pop(0))
PST = [64, 66, 68, 70, 76, 78, 60, 62]
for n in range(0, DEPTH):
    issue_tile(n)
    if DEBUG: g(f"s_memrealtime s[{PST[n]}:{PST[n]+1}]")
    after_tile(n)
    if n == 1: srd(sV, 8, 9, f"s{t3}", 131072)
if DEBUG:
    g("s_waitcnt lgkmcnt(0)")
    for n in range(DEPTH): g(f"v_writelane_b32 v{vSTAMP}, s{PST[n]}, {48+n}")
PRO_DONE[0] = 1
g(f"s_mov_b32 s{sBud}, s{s3}")
if DEBUG: g("s_memrealtime s[92:93]")
g(f"""
s_mul_i32 s{t0}, s{sG}, {512*1152}
s_lshl_b32 s{t1}, s{sI}, 6
s_add_u32 s{t0}, s{t0}, s{t1}
s_sub_u32 s{t1}, {4096*1152}, s{t0}
s_cmp_lt_u32 s{sI}, 18
s_cselect_b32 s{t1}, s{t1}, 0
""")
srd(sWO, 12, 13, f"s{t0}", f"s{t1}")
g(f"""
s_lshl_b32 s{sXO}, s{sI}, 12
s_lshl_b32 s{t2}, s{sG}, 9
s_add_u32 s{sXO}, s{sXO}, s{t2}
s_add_u32 s{sXO}, s{sXO}, {XR}
s_sub_u32 s{s3}, s{sI}, 14
s_cmp_ge_u32 s{sI}, 14
s_cselect_b32 s{s3}, s{s3}, 0
s_mul_i32 s{t0}, s{sG}, 1152
s_lshl_b32 s{t1}, s{s3}, 6
s_add_u32 s{t0}, s{t0}, s{t1}
s_sub_u32 s{t1}, {576*9216}, s{t0}
s_cmp_ge_u32 s{sI}, 14
s_cselect_b32 s{t1}, s{t1}, 0
""")
srd(sW1, 16, 17, f"s{t0}", f"s{t1}")
srd(sWSF, 18, 19, f"s{t0}", 64)
g(f"""
s_lshl_b32 s{sXRd}, s{s3}, 12
s_add_u32 s{sXRd}, s{sXRd}, {XR}
s_sub_u32 s{t3}, s{sI}, 4
s_sub_u32 s{t2}, s{sI}, 18
s_cmp_lt_u32 s{t2}, 4
s_cselect_b32 s{t3}, s{t3}, -1
s_cmp_lt_u32 s{sI}, 14
s_cselect_b32 s{t3}, s{sI}, s{t3}
s_max_i32 s{t2}, s{t3}, 0
s_mul_i32 s{t0}, s{sG}, {576*1152}
s_lshl_b32 s{t1}, s{t2}, 6
s_add_u32 s{t0}, s{t0}, s{t1}
s_sub_u32 s{t1}, {4608*1152}, s{t0}
""")
srd(sW2, 20, 21, f"s{t0}", f"s{t1}")
srd(sWSS, 22, 23, 0, 1152)
g(f"s_mov_b32 s{sRB}, s{sBud}\ns_mov_b32 s{sOOR}, s{sPass}")
srd(sOUT, 24, 25, 0, 4608)
srd(sDBG, 26, 27, 0, 256)
g(f"""
s_mov_b32 s{sCF2}, s{t3}
s_lshl_b32 s{sXF2}, s{t2}, 12
s_lshl_b32 s{t0}, s{sG}, 9
s_add_u32 s{sXF2}, s{sXF2}, s{t0}
s_add_u32 s{sXF2}, s{sXF2}, {XR+XI}
s_lshl_b32 s{sRc}, s{s3}, 6
s_getreg_b32 s{sFlag}, hwreg(HW_REG_XCC_ID, 0, 4)
s_or_b32 s{sFlag}, s{sFlag}, 16
{"v_writelane_b32 v%d, s%d, 58" % (vSTAMP, sFlag) if DEBUG else ""}
s_mov_b32 s{sInv}, {f32(1/576):#x}
s_mov_b32 s{sEps}, {f32(1e-5):#x}
s_mov_b32 s{sC}, {f32(128**-0.5*math.log2(math.e)):#x}
s_mov_b32 s{sBud}, 20000
s_mov_b32 s{sPass}, 0
v_mul_u32_u24 v{vRS}, 1152, v{T+2}
v_lshl_add_u32 v{vHS}, v{T+1}, 1, v{vRS}
v_lshl_add_u32 v{vRS}, v{T+1}, 2, v{vRS}
s_lshl_b32 s{t0}, s{sW}, 5
v_add_u32 v{vHS}, s{t0}, v{vHS}
v_lshlrev_b32 v{T+3}, 1, v{T+1}
v_add_u32 v{T+3}, s{t0}, v{T+3}
v_lshlrev_b32 v{T+8}, 2, v{T+1}
""")
g.vmem(f"buffer_load_ushort v{vB1}, v{T+3}, {sd(sWSF)}, 0 offen", "sm")
g.vmem(f"buffer_load_dword v{vB2}, v{T+8}, {sd(sWSS)}, s{sRc} offen", "sm")
g.vmem(f"buffer_load_dword v{vRES}, v{vRS}, {sd(sX0)}, s{sRc} offen", "sm")
nf = g.lab("Lnf")
g(f"""s_cmp_lg_u32 s{sW}, 0
s_cbranch_scc1 {nf}""")
g.wait_vm("clr")
g(f"""v_mov_b32 v{T}, s{sFlag}
v_mov_b32 v{T+3}, s2
s_mov_b64 exec, 1
buffer_store_byte v{T}, v{T+3}, {sd(sDBG)}, 0 offen sc1
s_mov_b64 exec, -1
{nf}:""")
if DEBUG: g(f"s_memrealtime s[96:97]\ns_waitcnt lgkmcnt(0)\nv_writelane_b32 v{vSTAMP}, s88, 59\nv_writelane_b32 v{vSTAMP}, s92, 61\nv_writelane_b32 v{vSTAMP}, s96, 62")
set_pass_offsets()
g(f"""
s_mul_i32 s{t1}, s{sW}, {WREG}
v_lshlrev_b32 v{vL4}, 2, v{vL}
v_lshlrev_b32 v{vL8}, 3, v{vL}
v_lshl_add_u32 v{T+3}, v{T+1}, 8, s{t1}
""")
for ks in range(4):
    g(f"""v_add_u32 v{T+8}, {4*ks}, v{T+2}
    v_xor_b32 v{T+8}, v{T+8}, v{T+1}
    v_lshl_add_u32 v{vKR+ks}, v{T+8}, 4, v{T+3}""")
g(f"""
v_lshrrev_b32 v{T+8}, 2, v{vL}
v_lshl_add_u32 v{T+3}, v{T+8}, 8, s{t1}
v_and_b32 v{T+9}, 1, v{vL}
v_lshl_add_u32 v{T+3}, v{T+9}, 3, v{T+3}
v_bfe_u32 v{T+9}, v{vL}, 1, 1
v_xor_b32 v{T+9}, v{T+9}, v{T+8}
""")
for tau in range(8):
    g(f"v_xor_b32 v{T+10}, {2*tau}, v{T+9}\nv_lshl_add_u32 v{vVR+tau}, v{T+10}, 4, v{T+3}")
g(f"""
v_and_b32 v{T+9}, 3, v{vL}
v_lshlrev_b32 v{T+9}, 3, v{T+9}
v_add_u32 v{T+9}, s{t1}, v{T+9}
v_bfe_u32 v{T+10}, v{vL}, 2, 2
v_lshl_add_u32 v{T+10}, v{T+2}, 3, v{T+10}
v_lshl_add_u32 v{vT32a}, v{T+10}, 5, v{T+9}
v_lshl_add_u32 v{vT64a}, v{T+10}, 6, v{T+9}
v_and_b32 v{T+9}, 3, v{vL}
v_lshlrev_b32 v{T+9}, 4, v{T+9}
v_mul_u32_u24 v{vWD1}, 1152, v{T+8}
v_add_u32 v{vWD1}, v{vWD1}, v{T+9}
v_mul_u32_u24 v{vWD9}, 9216, v{T+8}
v_add_u32 v{vWD9}, v{vWD9}, v{T+9}
s_lshl_b32 s{t0}, s{sW}, 9
s_add_u32 s{t0}, s{t0}, {PA}
v_lshlrev_b32 v{vPW}, 6, v{T+1}
v_lshl_add_u32 v{vPW}, v{T+2}, 4, v{vPW}
v_add_u32 v{vPW}, s{t0}, v{vPW}
v_add_u32 v{vPW1}, s{t0}, v{vL4}
s_lshl_b32 s{t0}, s{sW}, 8
s_add_u32 s{t0}, s{t0}, {PA}
v_add_u32 v{vPR}, s{t0}, v{vL4}
v_bfe_u32 v{T+10}, v{vL}, 2, 1
v_lshl_add_u32 v{vPR4}, v{T+10}, 8, v{T+9}
v_bfe_u32 v{T+10}, v{vL}, 3, 2
v_lshl_add_u32 v{vPR4}, v{T+10}, 6, v{vPR4}
v_add_u32 v{vPR4}, {PA}, v{vPR4}
s_lshl_b32 s{t0}, s{sW}, 3
s_add_u32 s{t0}, s{t0}, {STA}
v_lshlrev_b32 v{vSTW}, 5, v{T+1}
v_add_u32 v{vSTW}, s{t0}, v{vSTW}
v_add_u32 v{T+10}, 4, v{vSTW}
v_cmp_gt_u32 vcc, 16, v{vL}
v_mov_b32 v{T+11}, {DUMP}
v_cndmask_b32 v{vSTW}, v{vSTW}, v{T+10}, vcc
v_and_b32 v{T+10}, 44, v{vL}
v_cmp_eq_u32 vcc, 0, v{T+10}
v_lshlrev_b32 v{vSTR}, 5, v{T+2}
v_add_u32 v{vSTR}, {STA}, v{vSTR}
v_cndmask_b32 v{vSTW}, v{T+11}, v{vSTW}, vcc
s_lshl_b32 s{t0}, s{sW}, 10
s_add_u32 s{t0}, s{t0}, {AO}
v_and_b32 v{T+9}, 1, v{vL}
v_lshlrev_b32 v{vAOW}, 9, v{T+9}
v_lshl_add_u32 v{vAOW}, v{T+2}, 4, v{vAOW}
v_add_u32 v{vAOW}, s{t0}, v{vAOW}
s_lshl_b32 s{t0}, s{sW}, 9
s_add_u32 s{t0}, s{t0}, {AO}
v_add_u32 v{vAOR}, s{t0}, v{vL8}
v_lshlrev_b32 v{vMR}, 4, v{T+9}
v_add_u32 v{vMR}, {ME}, v{vMR}
s_lshl_b32 s{t0}, s{sW}, 2
v_add_u32 v{vMW}, s{t0}, v{vMR}
v_lshlrev_b32 v{vSS}, 7, v{T+9}
s_bfe_u32 s{t0}, s{sI}, 0x20001
s_lshl_b32 s{t0}, s{t0}, 10
s_and_b32 s{t1}, s{sI}, 1
s_lshl_b32 s{t1}, s{t1}, 9
s_add_u32 s{t0}, s{t0}, s{t1}
v_lshlrev_b32 v{vQF}, 8, v{T+9}
v_lshl_add_u32 v{vQF}, v{T+2}, 4, v{vQF}
v_add_u32 v{vQF}, s{t0}, v{vQF}
s_lshl_b32 s{t0}, s{sW}, 12
v_lshlrev_b32 v{vOF}, 8, v{T+1}
v_lshl_add_u32 v{vOF}, v{T+2}, 4, v{vOF}
v_add_u32 v{vOF}, s{t0}, v{vOF}
s_lshl_b32 s{t0}, s{sW}, 7
v_lshlrev_b32 v{vSF}, 5, v{T+2}
v_add_u32 v{vSF}, s{t0}, v{vSF}
""")
stamp()
def q1_stage():
    g.wait_vm("wq")
    for ks in range(5):
        for h in range(2):
            g(f"ds_read_b64_tr_b16 {vr(WQ+4*ks+2*h,2)}, v{vT32a} offset:{32768+1024*ks+128*h}")
    for k in range(4): g(f"v_mov_b32 v{T+4+k}, 0x3f803f80")
    g("s_waitcnt lgkmcnt(0)")
    m4_mms(WQ, 1, True, PA, STA, None, PC)
    nq = g.lab("Lnq")
    g(f"s_cmp_lg_u32 s{sW}, 0\ns_cbranch_scc1 {nq}")
    m4_final_ln(PA, STA, vCSQ, PC)
    g(f"v_mul_f32 v{T}, v{T}, v{T+5}")
    pack_pairs(T, T)
    g(f"""s_lshl_b32 s{t0}, s{sG}, 12
    s_add_u32 s{t0}, s{t0}, {QB0}
    s_mov_b32 exec_lo, {EVEN}
    s_mov_b32 exec_hi, {EVEN}
    buffer_store_dword v{T}, v{vQS}, {sd(sWS)}, s{t0} offen sc1
    s_mov_b64 exec, -1
    {nq}:""")
    stamp()

NT = OPT["NT"]; NQ = NT + DEPTH - 1; NQK = min(NT + 2 * DEPTH - 2, 15)
Q1S = OPT["Q1S"]; WOS = OPT["WOS"]; W1S = OPT["W1S"]
vTAB = T + 12
def tab_load(tag):
    if OPT["NOTAB"]:
        g(f"s_mul_i32 s{t0}, s{sFlag}, 0x01010101\nv_mov_b32 v{vTAB}, s{t0}"); g.vm.append(tag); g("buffer_load_dword v0, v0, s[48:51], 0 offen")
    elif OPT["TABM"] == 1 and tag is not None: g.vmem(f"buffer_load_dword v{vTAB}, v{vL4}, {sd(sDBG)}, 0 offen", tag)
    else: g.vmem(f"buffer_load_dword v{vTAB}, v{vL4}, {sd(sDBG)}, 0 offen sc1", tag)
def q0_loads(tag):
    g(f"s_lshl_b32 s{t0}, s{sG}, 12\ns_add_u32 s{t0}, s{t0}, {QB0}")
    q_loads(f"s{t0}", tag)
def tab_chk(dst):
    g(f"""v_and_b32 v{T+1}, 0x10101010, v{vTAB}
    s_mov_b32 s{t0}, 0x10101010
    v_cmp_ne_u32 {dst}, s{t0}, v{T+1}""")
sTB = "s[90:91]"
pvdone = 0
def sstamp(lane):
    if OPT["SS"]: g(f"s_memrealtime s[100:101]\ns_waitcnt lgkmcnt(0)\nv_writelane_b32 v{vSTAMP}, s100, {12+lane}")
for n in range(16):
    g.wait_vm(f"t{n}")
    sstamp(n)
    nn = n + DEPTH
    if DEPTH == 7 and nn < 16 and nn >= 8: g("s_waitcnt lgkmcnt(0)")
    if n == NT: tab_load("tab")
    if n == NQ:
        g.wait_vm("tab")
        tab_chk("vcc")
        g(f"s_or_b32 s{s3}, vcc_lo, vcc_hi")
        q0_loads("q0")
    if nn < 16: issue_tile(nn); after_tile(nn)
    sstamp(16 + n)
    if n < 8:
        for ks in range(4):
            g(f"ds_read_b128 {ar(16*n+4*ks,4)}, v{vKR+ks} offset:{4096*n}")
    else:
        t = n - 8
        for tau in range(8):
            g(f"ds_read_b64_tr_b16 {ar(128+32*(t>>1)+4*tau+2*(t&1),2)}, v{vVR+tau} offset:{4096*t}")
    if n == WOS:
        wdma(sWO, vWD1, 1152, 128, LWO, 0, 8, "wo")
    if n == W1S:
        g("s_waitcnt lgkmcnt(0)")
        wdma(sW1, vWD9, 9216, 160, LW1, 0, 10, "w1")
    if n == Q1S: q1_stage()
    if n == DEPTH:
        g(f"""v_lshlrev_b32 v{vB1}, 16, v{vB1}
        v_and_b32 v{vB2+1}, 0xffff0000, v{vB2}
        v_lshlrev_b32 v{vB2}, 16, v{vB2}
        v_and_b32 v{vRES+1}, 0xffff0000, v{vRES}
        v_lshlrev_b32 v{vRES}, 16, v{vRES}""")
    if n == NQK:
        stamp()
        loop = g.lab("Ltq"); loop2 = g.lab("Ltq"); first = g.lab("Ltq"); qgo = g.lab("Ltq")
        g(f"s_cmp_eq_u32 s{s3}, 0\ns_cbranch_scc1 {first}\n{loop}:")
        sv = list(g.vm)
        tab_load(None); g("s_waitcnt vmcnt(0)")
        tab_chk("vcc")
        F = FINE[0]; FINE[0] = 0
        retry(loop)
        g(f"{loop2}:")
        q0_loads(None); g("s_waitcnt vmcnt(0)")
        g.vm = sv
        g(f"{first}:")
        g.wait_vm("q0")
        for x in chk_ops(list(range(QO, QO + 16)), T): g(x)
        retry(loop2)
        FINE[0] = F
        g(f"""s_and_b32 s{t0}, s{sG}, 3
        s_lshl_b32 s{t0}, s{t0}, 3
        v_lshrrev_b32 v{T+1}, s{t0}, v{vTAB}
        v_and_b32 v{T+1}, 0xff, v{T+1}
        v_cmp_ne_u32 vcc, s{sFlag}, v{T+1}
        s_mov_b32 s{t0}, {EVEN}
        s_lshr_b32 s{t1}, s{sG}, 2
        s_lshl_b32 s{t0}, s{t0}, s{t1}
        s_and_b32 s{t1}, vcc_lo, s{t0}
        s_and_b32 s{t2}, vcc_hi, s{t0}
        s_or_b32 s{t1}, s{t1}, s{t2}
        s_mov_b32 s{sWSF}, s{sWS}
        s_mov_b32 s{sWSF+1}, s{sWS+1}
        s_mov_b32 s{sWSS}, s{sWS}
        s_mov_b32 s{sWSS+1}, s{sWS+1}
        s_cmp_eq_u32 s{t1}, {1 if OPT['FORCE_SLOW'] else 0}
        s_cselect_b32 s{sWSF+2}, {WSREC}, 0
        s_cselect_b32 s{sWSS+2}, 0, {WSREC}
        s_waitcnt lgkmcnt(0)""")
        stamp()
        qk(None)
        g(f"""s_mov_b64 exec, 3
        ds_write_b32 v{vMW}, v{T}
        s_mov_b64 exec, -1
        s_waitcnt lgkmcnt(0)
        s_barrier
        ds_read_b128 {vr(T+4,4)}, v{vMR}
        s_waitcnt lgkmcnt(0)
        v_max3_f32 v{T}, v{T+4}, v{T+5}, v{T+6}
        v_max_f32 v{T}, v{T}, v{T+7}
        v_mul_f32 v{T+2}, s{sC}, v{T}
        v_mul_f32 v{T+3}, -1.0, v{T+2}""")
        for x in softmax_p(T + 3): g(x)
        g(f"v_add_f32 v{S}, v{S}, v{S+1}\nv_add_f32 v{S+2}, v{S+2}, v{S+3}\nv_add_f32 v{S}, v{S}, v{S+2}")
        for x in red_steps("v_add_f32", S, S + 1): g(x)
        g(f"""s_mov_b64 exec, 3
        ds_write_b32 v{vMW}, v{S} offset:32
        s_mov_b64 exec, -1""")
        stamp()
    if n >= NQK:
        avail = (n - 7) // 2
        if avail > pvdone:
            g("s_waitcnt lgkmcnt(0)")
            for u in range(pvdone, avail):
                if u == 3: stamp()
                for tau in range(8): g(pv(u, tau))
            pvdone = avail
wr = [f"ds_write_b128 v{vAOW}, {vr(D+4*tau,4)} offset:{64*tau}" for tau in range(8)]
for x in exec_m2(): g(x)
for x in wr: g(x)
g("s_mov_b64 exec, -1")
g("s_waitcnt lgkmcnt(0)\ns_barrier")
attn_final()
stamp()
nw = g.lab("Lnw")
g(f"s_cmp_lt_i32 s{sCF2}, 14\ns_cbranch_scc1 {nw}")
sv = list(g.vm)
wdma(sW2, vWD1, 1152, 160, LW2, 0, 10, None)
g.vm = sv
g(f"{nw}:")

flush_stamps(0)
if DEBUG:
    for k in range(9): g(f"s_mov_b32 s{4+2*k}, 0")
g("LTOP:")
FINE[0] = 1
noO = g.lab("LnoO")
g(f"s_cmp_ge_u32 s{sI}, 18\ns_cbranch_scc1 {noO}")
np_ = g.lab("Lnp")
g(f"s_cmp_lg_u32 s{sPass}, 0\ns_cbranch_scc1 {np_}")
g.wait_vm("wo")
prep64(WO, LWO, 4)
g(f"{np_}:")
loop = g.lab("Lo")
g(f"{loop}:")
for ks in range(4):
    g(f"buffer_load_dwordx4 {vr(QO+4*ks,4)}, v{vOF}, {sd(sWS)}, s{sOB} offen offset:{64*ks} sc1")
g(f"buffer_load_dwordx4 {vr(ST,4)}, v{vSF}, {sd(sWS)}, s{sSB} offen sc1")
g(f"buffer_load_dwordx4 {vr(ST+4,4)}, v{vSF}, {sd(sWS)}, s{sSB} offen offset:16 sc1")
g("s_waitcnt vmcnt(0)")
om = [mfma32(D + 4 * t, vr(QO + 4 * ks, 4), vr(WO + 16 * t + 4 * ks, 4), "0" if ks == 0 else vr(D + 4 * t, 4)) for t in range(2) for ks in range(4)]
weave(om[:3], chk_ops(list(range(QO, QO + 16)) + list(range(ST, ST + 8)), T), [5, 5, 5])
retry(loop)
sc = [f"v_max3_f32 v{T}, v{ST}, v{ST+1}, v{ST+2}", f"v_max_f32 v{T}, v{T}, v{ST+3}"]
sc += [f"v_sub_f32 v{ST+k}, v{ST+k}, v{T}" for k in range(4)]
sc += [f"v_exp_f32 v{ST+k}, v{ST+k}" for k in range(4)]
sc += [f"v_pk_mul_f32 {vr(ST+4,2)}, {vr(ST+4,2)}, {vr(ST,2)}", f"v_pk_fma_f32 {vr(ST+4,2)}, {vr(ST+6,2)}, {vr(ST+2,2)}, {vr(ST+4,2)}",
       f"v_add_f32 v{T}, v{ST+4}, v{ST+5}", f"v_rcp_f32 v{T}, v{T}"]
sc += [f"v_pk_mul_f32 {vr(D,2)}, {vr(D,2)}, {vr(ST,2)}", f"v_pk_fma_f32 {vr(D,2)}, {vr(D+2,2)}, {vr(ST+2,2)}, {vr(D,2)}",
       f"v_add_f32 v{D}, v{D}, v{D+1}", f"v_mul_f32 v{D}, v{D}, v{T}", f"ds_write_b32 v{vPW1}, v{D} offset:{PB-PA}"]
weave(om[3:], sc, [3, 4, 4, 4, 4])
g(f"""v_pk_mul_f32 {vr(D+4,2)}, {vr(D+4,2)}, {vr(ST,2)}
v_pk_fma_f32 {vr(D+4,2)}, {vr(D+6,2)}, {vr(ST+2,2)}, {vr(D+4,2)}
v_add_f32 v{D+4}, v{D+4}, v{D+5}
v_mul_f32 v{D+4}, v{D+4}, v{T}
ds_write_b32 v{vPW1}, v{D+4} offset:{PB-PA+256}
s_waitcnt lgkmcnt(0)
s_barrier""")
x_final(PB, f"s{sXO}")
stamp()
nw = g.lab("Lnw")
g(f"s_cmp_lg_u32 s{sPass}, 0\ns_cbranch_scc1 {nw}\ns_cmp_ge_u32 s{sI}, 14\ns_cbranch_scc1 {nw}")
wdma(sW2, vWD1, 1152, 160, LW2, 0, 10, None)
g(f"{nw}:")
g(f"{noO}:")
noR = g.lab("LnoR")
g(f"s_cmp_lt_u32 s{sI}, 14\ns_cbranch_scc1 {noR}")
np_ = g.lab("Lnp")
g(f"s_cmp_lg_u32 s{sPass}, 0\ns_cbranch_scc1 {np_}")
g("s_waitcnt vmcnt(0)")
prep64(W1, LW1, 5)
for k in range(4): g(f"v_mov_b32 v{T+4+k}, 0x3f803f80")
for t in range(2):
    for ks in range(5):
        g(mm(D + 12 + 4 * t, wfrag(W1, t, ks), vr(T + 4, 4), ks))
g(f"s_mov_b64 exec, {sM4}")
for t in range(2): g(f"ds_write_b128 v{vPW}, {vr(D+12+4*t,4)} offset:{PC-PA+256*t}")
g(f"""s_mov_b64 exec, -1
s_waitcnt lgkmcnt(0)
s_barrier
ds_read2st64_b32 {vr(D,2)}, v{vPR} offset0:{(PC-PA)//256} offset1:{(PC-PA)//256+2}
ds_read2st64_b32 {vr(D+2,2)}, v{vPR} offset0:{(PC-PA)//256+4} offset1:{(PC-PA)//256+6}
s_waitcnt lgkmcnt(0)
v_add_f32 v{D}, v{D}, v{D+1}
v_add_f32 v{D+2}, v{D+2}, v{D+3}
v_add_f32 v{vCS1}, v{D}, v{D+2}
{np_}:""")
r_stage(0, False, False)
stamp()
loop = g.lab("Lf1")
g(f"{loop}:")
x_loads(sWS, f"s{sXB}", " sc1")
g("s_waitcnt vmcnt(0)")
m4_mms(W1, 2, True, PA, STB, loop)
nf = g.lab("Lnf")
g(f"s_cmp_gt_u32 s{sW}, 1\ns_cbranch_scc1 {nf}")
m4_final_ln(PA, STB, vCS1)
c0 = -2 * math.sqrt(2 / math.pi) * math.log2(math.e)
g(f"""v_fma_f32 v{T}, v{T}, v{T+5}, v{vB1}
v_mov_b32 v{T+2}, {f32(c0):#x}
v_mul_f32 v{T+1}, v{T}, v{T}
v_fmac_f32 v{T+2}, {f32(c0*0.044715):#x}, v{T+1}
v_mul_f32 v{T+2}, v{T+2}, v{T}
v_exp_f32 v{T+2}, v{T+2}
s_add_u32 s{t0}, s{sHB}, s{sRc}
v_add_f32 v{T+2}, 1.0, v{T+2}
v_rcp_f32 v{T+2}, v{T+2}
s_nop 0
v_mul_f32 v{T}, v{T}, v{T+2}""")
pack_pairs(T, T)
g(f"s_mov_b32 exec_lo, {EVEN}\ns_mov_b32 exec_hi, {EVEN}")
lstore("buffer_store_dword", f"v{T}", vHS, f"s{t0}")
g(f"s_mov_b64 exec, -1\n{nf}:")
stamp()
g(f"{noR}:")
noF2 = g.lab("LnoF2")
g(f"s_cmp_lt_i32 s{sCF2}, 0\ns_cbranch_scc1 {noF2}")
np_ = g.lab("Lnp")
g(f"s_cmp_lg_u32 s{sPass}, 0\ns_cbranch_scc1 {np_}")
g("s_waitcnt vmcnt(0)")
prep64(W2, LW2, 5)
g(f"{np_}:")
loop = g.lab("Lf2")
g(f"{loop}:")
x_loads(sWS, f"s{sHB}", " sc1")
g("s_waitcnt vmcnt(0)")
m4_mms(W2, 2, False, PB, STB, loop)
x_final(PB, f"s{sXF2}")
stamp()
g(f"{noF2}:")
noR2 = g.lab("LnoR")
g(f"s_cmp_lt_u32 s{sI}, 14\ns_cbranch_scc1 {noR2}")
FINE[0] = 0
r_stage(XI, True, True)
FINE[0] = 1
g(f"{noR2}:")
stamp()
g(f"s_cmp_lg_u32 s{sPass}, 0\ns_cbranch_scc1 LFIN")
nst_loop = nstamp[0]
flush_stamps(12)
g(f"""s_mov_b32 s{sPass}, 1
s_add_u32 s{sXO}, s{sXO}, {2*XI}
s_add_u32 s{sXF2}, s{sXF2}, {2*XI}
s_add_u32 s{sXRd}, s{sXRd}, {2*XI}""")
set_pass_offsets()
loop = g.lab("Lq2")
g(f"s_add_u32 s{t3}, s{sGB}, {XB2}")
g(f"{loop}:")
x_loads(sWS, f"s{t3}", " sc1")
g("s_waitcnt vmcnt(0)")
m4_mms(WQ, 1, True, PA, STA, loop)
nq = g.lab("Lnq")
g(f"s_add_u32 s{t3}, s{sGB}, {QB1}")
g(f"s_cmp_lg_u32 s{sW}, 0\ns_cbranch_scc1 {nq}")
m4_final_ln(PA, STA, vCSQ)
g(f"v_mul_f32 v{T}, v{T}, v{T+5}")
pack_pairs(T, T)
g(f"s_mov_b32 exec_lo, {EVEN}\ns_mov_b32 exec_hi, {EVEN}")
lstore("buffer_store_dword", f"v{T}", vQS, f"s{t3}")
g(f"s_mov_b64 exec, -1\n{nq}:")
stamp()
loop = g.lab("La2")
g(f"{loop}:")
q_loads(f"s{t3}")
g("s_waitcnt vmcnt(0)")
qk(loop)
stamp()
g(f"""v_mul_f32 v{T+2}, s{sC}, v{T}
v_mul_f32 v{T+3}, -1.0, v{T+2}
s_mov_b64 exec, 3
ds_write_b32 v{vMW}, v{T+2}
s_mov_b64 exec, -1""")
rest = softmax_p(T + 3)
pm = [pv(u, tau) for tau in range(8) for u in range(4)]
weave(pm[:4], rest, [4, 4, 4, 0])
g("s_waitcnt lgkmcnt(0)\ns_barrier")
g(f"ds_read_b128 {vr(T+4,4)}, v{vMR}")
lsum = [f"v_add_f32 v{S}, v{S}, v{S+1}", f"v_add_f32 v{S+2}, v{S+2}, v{S+3}", f"v_add_f32 v{S}, v{S}, v{S+2}"] + red_steps("v_add_f32", S, S + 1)
weave(pm[4:8], lsum[:6], [2, 2, 1, 1])
scl = ["s_waitcnt lgkmcnt(0)", f"v_max3_f32 v{T}, v{T+4}, v{T+5}, v{T+6}", f"v_max_f32 v{T+2}, v{T}, v{T+7}",
       f"v_add_f32 v{T+8}, v{T+3}, v{T+2}", f"v_exp_f32 v{T+8}, -v{T+8}"]
weave(pm[8:12], scl + lsum[6:9], [2, 2, 2, 2])
weave(pm[12:16], lsum[9:] + [f"v_mul_f32 v{S}, v{S}, v{T+8}", "s_mov_b64 exec, 3", f"ds_write_b32 v{vMW}, v{S} offset:32", "s_mov_b64 exec, -1"], [2, 2, 2, 2])
def sw(tau): return [f"v_pk_mul_f32 {vr(D+4*tau,2)}, {vr(D+4*tau,2)}, {vr(T+8,2)} op_sel_hi:[1,0]",
                     f"v_pk_mul_f32 {vr(D+4*tau+2,2)}, {vr(D+4*tau+2,2)}, {vr(T+8,2)} op_sel_hi:[1,0]"] + exec_m2() + \
                    [f"ds_write_b128 v{vAOW}, {vr(D+4*tau,4)} offset:{64*tau}", "s_mov_b64 exec, -1"]
weave(pm[16:20], sw(0) + sw(1), [3, 3, 3, 3])
weave(pm[20:24], sw(2) + sw(3), [3, 3, 3, 3])
weave(pm[24:28], sw(4), [0, 2, 2, 2])
weave(pm[28:32], sw(5) + sw(6), [2, 2, 2, 6])
for x in sw(7): g(x)
g("s_waitcnt lgkmcnt(0)\ns_barrier")
attn_final()
stamp()
flush_stamps(24)
nstamp[0] = 0
g("s_branch LTOP")
g("LFIN:")
if DEBUG:
    nstamp[0] = nst_loop
    flush_stamps(36)
    g(f"""s_lshl_b32 s{t0}, s2, 2
    s_add_u32 s{t0}, s{t0}, s{sW}
    s_lshl_b32 s{t0}, s{t0}, 8
    s_add_u32 s{t0}, s{t0}, {STAMPS}
    buffer_store_dword v{vSTAMP}, v{vL4}, {sd(sWS)}, s{t0} offen""")
g("LEND:")

lines, nn = hz.run(g.L)
ref = open(f"cdna_kernels/{NAME}.s.ref").read().split("\n")
head = []
for l in ref:
    if l.startswith("; @launch"):
        head.append(f"; @launch grid=(256,1,1) block=(256,1,1) lds={LDS_TOTAL}")
    else:
        head.append(l)
    if l.startswith(f"{NAME}_kernel:"): break
desc = f"""s_endpgm
.section .rodata,"a"
.p2align 6
.amdhsa_kernel {NAME}_kernel
  .amdhsa_next_free_vgpr 512
  .amdhsa_next_free_sgpr 102
  .amdhsa_accum_offset 256
  .amdhsa_group_segment_fixed_size 0
  .amdhsa_kernarg_size 104
  .amdhsa_user_sgpr_count 2
  .amdhsa_user_sgpr_kernarg_segment_ptr 1
  .amdhsa_system_sgpr_workgroup_id_x 1
.end_amdhsa_kernel
"""
open(sys.argv[1], "w").write("\n".join(head) + "\n" + "\n".join(lines) + "\n" + desc)
print(f"vgprs {NV}, lines {len(lines)}, nops {nn}, lds {LDS_TOTAL}")
```
